```python
import torch

def _softmax(x, axis=-1):
    return torch.softmax(x, dim=axis)
def _gelu(x):
    return torch.nn.functional.gelu(x, approximate="tanh")
def _silu(x):
    return torch.nn.functional.silu(x)
def _sigmoid(x):
    return torch.sigmoid(x)
def _layernorm(x, axis=-1, eps=1e-5):
    m = x.mean(dim=axis, keepdim=True)
    v = x.var(dim=axis, keepdim=True, unbiased=False)
    return (x - m) / torch.sqrt(v + eps)
def _scatter_add(tgt, idx, src, axis=0):
    return tgt.clone().index_add_(axis, idx, src)
def _segment_sum(src, seg, n):
    out = torch.zeros((n,) + src.shape[1:], dtype=src.dtype)
    return out.index_add_(0, seg, src)
def _pad(x, pw):
    flat = tuple(v for pair in reversed(pw) for v in pair)
    return torch.nn.functional.pad(x, flat)

kernel_name = 'gated_mix__ssm_conv_h3__glu_gated_swiglu__prompt'

def setup_inputs():

    _w = (lambda a: (lambda t: t.to(torch.bfloat16) if t.is_floating_point() else t)(torch.as_tensor(a)))
    def _A_setup():
        B, S, D = 1, 2048, 640
        ks = 4
        return {
            "q": _w((lambda *s: torch.randn(*s, dtype=torch.bfloat16) * 0.05)(B, S, D)),
            "k": _w((lambda *s: torch.randn(*s, dtype=torch.bfloat16) * 0.2)(B, S, D)),
            "v": _w((lambda *s: torch.randn(*s, dtype=torch.bfloat16) * 0.2)(B, S, D)),
            "shift_k": _w((lambda *s: torch.randn(*s, dtype=torch.bfloat16) * 0.2)(D, ks) * 0.5),
            "ssm_k": _w((lambda *s: torch.randn(*s, dtype=torch.bfloat16) * 0.2)(D, S) * (1.0 / S ** 0.5)),
            "ssm_D": _w((lambda *s: torch.randn(*s, dtype=torch.bfloat16) * 0.2)(D)),
        }
    _A_in = _A_setup()

    def _B_setup():
        B, S, D, F = 1, 2048, 640, 1728
        return {
            "x": _w((lambda *s: torch.randn(*s, dtype=torch.bfloat16) * 0.05)(B, S, D)),
            "w1": _w((lambda *s: torch.randn(*s, dtype=torch.bfloat16) * 0.4)(D, F) * (2.0 / D) ** 0.5),
            "w3": _w((lambda *s: torch.randn(*s, dtype=torch.bfloat16) * 0.4)(D, F) * (2.0 / D) ** 0.5),
            "w2": _w((lambda *s: torch.randn(*s, dtype=torch.bfloat16) * 0.4)(F, D) * (2.0 / F) ** 0.5),
        }
    _B_in = _B_setup()

    return {
        "A_q": _A_in["q"],
        "A_k": _A_in["k"],
        "A_v": _A_in["v"],
        "A_shift_k": _A_in["shift_k"],
        "A_ssm_k": _A_in["ssm_k"],
        "A_ssm_D": _A_in["ssm_D"],
        "B_x": _B_in["x"],
        "B_w1": _B_in["w1"],
        "B_w3": _B_in["w3"],
        "B_w2": _B_in["w2"],
        "gate_w": _w((lambda *s: torch.randn(*s, dtype=torch.bfloat16) * 0.05)(640) * 16.0),
    }

def reference(A_q, A_k, A_v, A_shift_k, A_ssm_k, A_ssm_D, B_x, B_w1, B_w3, B_w2, gate_w):
    def _A_ref(q, k, v, shift_k, ssm_k, ssm_D):
        B, S, D = q.shape
        ks = shift_k.shape[-1]
        k_pad = _pad(k, ((0, 0), (ks - 1, 0), (0, 0)))
        k_shift = torch.zeros_like(k)
        for t in range(ks):
            k_shift = k_shift + k_pad[:, t:t + S, :] * shift_k[:, ks - 1 - t][None, None, :]
        kv = k_shift * v
        L = 2 * S
        kv_pad = _pad(kv, ((0, 0), (0, S), (0, 0)))
        kf_pad = _pad(ssm_k, ((0, 0), (0, S)))
        kv_f = (lambda x, axes=(-2,-1): torch.fft.rfft2(x.float(), dim=axes))(kv_pad[:, None, :, :], axes=(1, 2))
        kf_f = (lambda x, axes=(-2,-1): torch.fft.rfft2(x.float(), dim=axes))(kf_pad[:, None, :], axes=(1, 2))
        kf_f = (lambda x, *d: x.permute(*d))(kf_f, 1, 2, 0)
        y_f = kv_f * kf_f[None, :, :, :]
        y = (lambda x, s, axes=(-2,-1): torch.fft.irfft2(x, s=s, dim=axes).to(torch.bfloat16))(y_f, (1, L), axes=(1, 2))[:, 0, :S, :]
        y = y + kv * ssm_D[None, None, :]
        return q * y

    def _B_ref(x, w1, w3, w2):
        gate = torch.einsum("bsd,df->bsf", x, w1)
        up = torch.einsum("bsd,df->bsf", x, w3)
        h = _silu(gate) * up
        out = torch.einsum("bsf,fd->bsd", h, w2)
        return out

    x = A_q
    g = _sigmoid((x * gate_w).sum(-1, keepdims=True))
    a = _A_ref(x, A_k, A_v, A_shift_k, A_ssm_k, A_ssm_D)
    b = _B_ref(x, B_w1, B_w3, B_w2)
    return g * a + (1 - g) * b
```

```python
import sys

NAME = "gated_mix__ssm_conv_h3__glu_gated_swiglu__prompt"
OUT = sys.argv[1] if len(sys.argv) > 1 else f"cdna_kernels/{NAME}.s"
STAMP = "stamp" in sys.argv[2:]

KVT = 0x000000
Y2T = 0x280000
HWS = 0x500000
GWS = 0xBC0000
FLK = 0xBD0000
FLG = 0xBD8000
FLH = 0xBE0000
FLY = 0xBF0000
WSN = 0xC00000
STP = 0xC00000
OOB = 0x7F000000

sW = 3
X_, W1_, W3_, W2_, WS_, K_, V_, SK_, O_, SH_, GW_, DB_, SD_ = [4 + 4 * i for i in range(13)]
sN = 56
sL, sUNIT, sSEG, sROW0, sIDX, sHF = 58, 59, 60, 61, 62, 63


def srd(r):
    return f"s[{r}:{r+3}]"


lines = []


def A(s):
    for l in s.split("\n"):
        l = l.strip()
        if l:
            lines.append(("" if l.endswith(":") else "    ") + l)


_lab = [0]


def label(p="L"):
    _lab[0] += 1
    return f"{p}{_lab[0]}"


def merge(main, fill, start=1, per=2):
    out = []
    fill = list(fill)
    for i, m in enumerate(main):
        out.append(m)
        if i + 1 >= start:
            for _ in range(per):
                if fill:
                    out.append(fill.pop(0))
    out += fill
    return out


def stamp(i):
    if not STAMP:
        return
    l = label("Lst")
    A(f"""s_cmp_lg_u32 s{sW}, 0
    s_cbranch_scc1 {l}
    s_memrealtime s[98:99]
    s_waitcnt lgkmcnt(0)
    v_mov_b32 v250, s98
    v_mov_b32 v251, s99
    s_lshl_b32 s98, s{sL}, 7
    s_add_u32 s98, s98, {STP + 8 * i}
    v_mov_b32 v252, s98
    s_mov_b64 exec, 1
    buffer_store_dwordx2 v[250:251], v252, {srd(WS_)}, 0 offen
    s_mov_b64 exec, -1
    {l}:""")


vLANE = 1
vNON = 2
vT = 4
vZERO = 16


def get_nonce():
    lp, dn = label("Lnp"), label("Lnd")
    A(f"""s_mov_b32 s96, 0
    {lp}:
    v_readfirstlane_b32 s{sN}, v{vNON}
    v_readfirstlane_b32 s{sN+1}, v{vNON+1}
    s_nop 3
    s_cmp_lg_u32 s{sN}, 0
    s_cbranch_scc1 {dn}
    s_sleep 2
    buffer_load_dwordx2 v[{vNON}:{vNON+1}], v{vZERO}, {srd(DB_)}, 0 offen sc1
    s_waitcnt vmcnt(0)
    s_add_u32 s96, s96, 1
    s_cmp_lt_u32 s96, 0x8000
    s_cbranch_scc1 {lp}
    {dn}:""")


def poll(vaddr, vd):
    lp, dn = label("Lpp"), label("Lpd")
    A(f"""s_mov_b32 s96, 0
    {lp}:
    buffer_load_dwordx2 v[{vd}:{vd+1}], v{vaddr}, {srd(WS_)}, 0 offen sc1
    s_waitcnt vmcnt(0)
    v_cmp_ne_u64 vcc, s[{sN}:{sN+1}], v[{vd}:{vd+1}]
    s_nop 3
    s_cmp_eq_u64 vcc, 0
    s_cbranch_scc1 {dn}
    s_sleep 4
    s_add_u32 s96, s96, 1
    s_cmp_lt_u32 s96, 0x8000
    s_cbranch_scc1 {lp}
    {dn}:""")


def signal(soff, vtmp):
    A(f"""v_mov_b32 v{vtmp}, s{sN}
    v_mov_b32 v{vtmp+1}, s{sN+1}
    v_mov_b32 v{vtmp+2}, {soff}
    s_mov_b64 exec, 1
    buffer_store_dwordx2 v[{vtmp}:{vtmp+1}], v{vtmp+2}, {srd(WS_)}, 0 offen sc1
    s_mov_b64 exec, -1""")


def prologue():
    A(f"""s_cmp_ge_u32 s2, 256
    s_cbranch_scc1 Lend
    s_load_dwordx16 s[64:79], s[0:1], 0
    s_load_dwordx8 s[80:87], s[0:1], 64
    s_load_dwordx4 s[88:91], s[0:1], 96
    v_lshrrev_b32 v4, 6, v0
    v_and_b32 v{vLANE}, 63, v0
    v_mov_b32 v{vZERO}, 0
    v_readfirstlane_b32 s{sW}, v4
    s_and_b32 s92, s2, 7
    s_lshl_b32 s92, s92, 5
    s_lshr_b32 s93, s2, 3
    s_add_u32 s{sL}, s92, s93
    s_lshr_b32 s{sHF}, s{sL}, 7
    s_and_b32 s92, s{sL}, 127
    s_mul_i32 s93, s92, 205
    s_lshr_b32 s93, s93, 10
    s_mul_i32 s94, s93, 5
    s_sub_u32 s94, s92, s94
    s_mul_i32 s95, s94, 192
    s_sub_u32 s96, s92, 100
    s_lshr_b32 s97, s96, 2
    s_add_u32 s97, s97, 20
    s_and_b32 s98, s96, 3
    s_lshl_b32 s99, s98, 8
    s_add_u32 s96, s96, 20
    s_cmp_lt_u32 s92, 100
    s_cselect_b32 s{sUNIT}, s93, s97
    s_cselect_b32 s{sSEG}, s94, s98
    s_cselect_b32 s{sROW0}, s95, s99
    s_cselect_b32 s96, s93, s96
    s_cselect_b32 s100, s94, 4
    s_lshl_b32 s95, s{sHF}, 10
    s_add_u32 s{sROW0}, s{sROW0}, s95
    s_mul_i32 s95, s{sHF}, 48
    s_add_u32 s96, s96, s95
    s_mul_i32 s95, s{sHF}, 80
    s_lshl_b32 s97, s{sUNIT}, 2
    s_add_u32 s95, s95, s97
    s_add_u32 s95, s95, s{sSEG}
    s_cmp_lt_u32 s100, 4
    s_cselect_b32 s{sIDX}, s95, s96
    s_waitcnt lgkmcnt(0)""")
    ptr = {X_: 64, K_: 66, V_: 68, SH_: 70, SK_: 72, SD_: 74, W1_: 78, W3_: 80, W2_: 82, GW_: 84, O_: 86, DB_: 88, WS_: 90}
    size = {X_: 2621440, K_: 2621440, V_: 2621440, SH_: 5120, SK_: 2621440, SD_: 1280, W1_: 2211840, W3_: 2211840,
            W2_: 2211840, GW_: 1280, O_: 2621440, DB_: 256, WS_: (WSN + 0x10000 if STAMP else WSN)}
    for r in ptr:
        A(f"""s_mov_b32 s{r}, s{ptr[r]}
        s_mov_b32 s{r+1}, s{ptr[r]+1}
        s_mov_b32 s{r+2}, {size[r]}
        s_mov_b32 s{r+3}, 0x20000""")
    stamp(0)
    A(f"""s_or_b32 s92, s{sL}, s{sW}
    s_cmp_lg_u32 s92, 0
    s_cbranch_scc1 Lnononce
    s_memrealtime s[92:93]
    s_waitcnt lgkmcnt(0)
    s_or_b32 s92, s92, 1
    v_mov_b32 v4, s92
    v_mov_b32 v5, s93
    s_mov_b64 exec, 1
    buffer_store_dwordx2 v[4:5], v{vZERO}, {srd(DB_)}, 0 offen sc1
    s_mov_b64 exec, -1
    Lnononce:""")


vXD, vWD, vXR0, vWR0, vXR, vWR = 17, 18, 19, 20, 21, 22
G1_F = 24
G1_ACC = 72
sKC, sDX, sDW, sDSx, sDSw, sDSLOT, sRSLOT, sCNT, sXW, sWW, sFL0, sISS = 64, 65, 66, 67, 68, 69, 70, 71, 72, 73, 74, 75
sTMP = 76


def g1_addr_setup(NT):
    XS = NT * 8320
    A(f"""v_lshrrev_b32 v4, 3, v{vLANE}
    v_and_b32 v5, 7, v{vLANE}
    v_lshlrev_b32 v5, 4, v5
    v_and_b32 v6, 1, v4
    v_lshrrev_b32 v7, 1, v4
    v_lshl_add_u32 v8, v7, 4, v6
    s_lshl_b32 s92, s{sW}, 2
    s_add_u32 s92, s92, s{sROW0}
    v_add_u32 v8, s92, v8
    s_movk_i32 s93, 1280
    v_mad_u32_u24 v{vXD}, v8, s93, v5
    v_lshl_add_u32 v8, v7, 2, v6
    s_lshl_b32 s92, s{sW}, 4
    v_add_u32 v8, s92, v8
    s_movk_i32 s93, 3456
    v_mad_u32_u24 v8, v8, s93, v5
    s_lshl_b32 s92, s{sUNIT}, 7
    v_add_u32 v{vWD}, s92, v8
    v_bfe_u32 v4, v{vLANE}, 1, 3
    v_mul_u32_u24 v4, 1040, v4
    v_and_b32 v5, 1, v{vLANE}
    v_bfe_u32 v6, v{vLANE}, 4, 1
    v_lshl_add_u32 v5, v6, 1, v5
    v_lshl_add_u32 v4, v5, 7, v4
    v_lshrrev_b32 v6, 5, v{vLANE}
    v_lshl_add_u32 v4, v6, 4, v4
    s_lshr_b32 s92, s{sW}, 1
    s_lshl_b32 s92, s92, 9
    v_add_u32 v{vXR0}, s92, v4
    v_bfe_u32 v4, v{vLANE}, 4, 1
    v_bfe_u32 v5, v{vLANE}, 3, 1
    v_lshl_add_u32 v4, v4, 1, v5
    v_mul_u32_u24 v4, 1056, v4
    v_bfe_u32 v5, v{vLANE}, 2, 1
    v_lshl_add_u32 v5, v6, 2, v5
    v_lshl_add_u32 v4, v5, 7, v4
    v_and_b32 v5, 3, v{vLANE}
    v_lshl_add_u32 v4, v5, 3, v4
    s_and_b32 s92, s{sW}, 1
    s_lshl_b32 s92, s92, 6
    s_add_u32 s92, s92, {XS}
    v_add_u32 v{vWR0}, s92, v4
    s_mul_i32 s{sXW}, s{sW}, 2080
    s_mul_i32 s{sWW}, s{sW}, 4224
    s_add_u32 s{sWW}, s{sWW}, {XS}
    s_mul_i32 s{sKC}, s{sSEG}, 3
    s_add_u32 s{sKC}, s{sKC}, s{sUNIT}
    s_mul_i32 s92, s{sKC}, 103
    s_lshr_b32 s92, s92, 10
    s_mul_i32 s92, s92, 10
    s_sub_u32 s{sKC}, s{sKC}, s92
    s_mov_b32 s{sDSLOT}, 0
    s_mov_b32 s{sISS}, 0""")


def g1_dma_begin(NT):
    S = NT * 8320 + 16896
    return [
        f"s_lshl_b32 s{sDX}, s{sKC}, 7",
        f"s_mul_i32 s{sDW}, s{sKC}, {64*3456}",
        f"s_cmp_ge_u32 s{sISS}, 10",
        f"s_cselect_b32 s{sDX}, {OOB}, s{sDX}",
        f"s_cselect_b32 s{sDW}, {OOB}, s{sDW}",
        f"s_add_u32 s{sDSx}, s{sDSLOT}, s{sXW}",
        f"s_add_u32 s{sDSw}, s{sDSLOT}, s{sWW}",
        f"s_add_u32 s{sISS}, s{sISS}, 1",
        f"s_add_u32 s{sKC}, s{sKC}, 1",
        f"s_cmp_eq_u32 s{sKC}, 10",
        f"s_cselect_b32 s{sKC}, 0, s{sKC}",
        f"s_add_u32 s{sDSLOT}, s{sDSLOT}, {S}",
        f"s_cmp_eq_u32 s{sDSLOT}, {3*S}",
        f"s_cselect_b32 s{sDSLOT}, 0, s{sDSLOT}",
    ]


def g1_dma_list(NT):
    d = []
    for q in range(4):
        mat, i = q >> 1, q & 1
        d.append(f"s_add_u32 m0, s{sDSw}, {q*1056}\ns_add_u32 s{sTMP}, s{sDW}, {2*i*3456}\n"
                 f"buffer_load_dwordx4 v{vWD}, {srd(W3_ if mat else W1_)}, s{sTMP} offen lds")
    for b in range(NT):
        for ii in range(2):
            d.append(f"s_add_u32 m0, s{sDSx}, {b*8320 + ii*1040}\ns_add_u32 s{sTMP}, s{sDX}, {(b*64 + 2*ii)*1280}\n"
                     f"buffer_load_dwordx4 v{vXD}, {srd(X_)}, s{sTMP} offen lds")
    return d


def g1_parts(NT):
    d = g1_dma_list(NT)
    n = len(d)
    cuts = [0, 3, 6, 8, 10] if n == 10 else [0, 3, 6, 9, 12]
    return [d[cuts[i]:cuts[i + 1]] for i in range(4)]


def g1_reads(NT, j, fs):
    F = G1_F + 24 * fs
    r = []
    for m in range(2):
        for sec in range(2):
            r.append(f"ds_read_b64_tr_b16 v[{F+4*m+2*sec}:{F+4*m+2*sec+1}], v{vWR} offset:{j*4224 + m*32 + sec*256}")
    for b in range(NT):
        r.append(f"ds_read_b128 v[{F+8+4*b}:{F+8+4*b+3}], v{vXR} offset:{b*8320 + j*32}")
    return [r[0], r[1], r[4], r[2], r[3]] + r[5:]


def g1_mfmas(NT, fs):
    F = G1_F + 24 * fs
    out = []
    for b in range(NT):
        for m in range(2):
            a = G1_ACC + 16 * (2 * b + m)
            out.append(f"v_mfma_f32_32x32x16_bf16 v[{a}:{a+15}], v[{F+4*m}:{F+4*m+3}], v[{F+8+4*b}:{F+8+4*b+3}], v[{a}:{a+15}]")
    return out


def g1_prologue_dma(NT):
    parts = g1_parts(NT)
    for c in range(2):
        A("\n".join(g1_dma_begin(NT)))
        A("\n".join(g1_dma_list(NT)))
    A("\n".join(g1_dma_begin(NT)))
    A("\n".join(parts[0]))


def g1_loop(NT, extra_after):
    S = NT * 8320 + 16896
    D = 2 * NT + 4
    parts = g1_parts(NT)
    for r in range(G1_ACC, G1_ACC + 32 * NT):
        A(f"v_mov_b32 v{r}, 0")
    A(f"""v_mov_b32 v{vXR}, v{vXR0}
    v_mov_b32 v{vWR}, v{vWR0}
    s_mov_b32 s{sRSLOT}, 0
    s_mov_b32 s{sCNT}, 0
    s_waitcnt vmcnt({D + len(parts[0]) + extra_after})
    s_barrier""")
    A("\n".join(g1_reads(NT, 0, 0)))
    top = label("Lg1")
    A(f"{top}:")
    for j in range(3):
        A("s_waitcnt lgkmcnt(0)")
        A("\n".join(merge(g1_mfmas(NT, j & 1), g1_reads(NT, j + 1, (j + 1) & 1) + parts[j + 1])))
    A(f"""s_add_u32 s{sRSLOT}, s{sRSLOT}, {S}
    s_cmp_eq_u32 s{sRSLOT}, {3*S}
    s_cselect_b32 s{sRSLOT}, 0, s{sRSLOT}
    s_waitcnt vmcnt({D}) lgkmcnt(0)
    s_barrier
    v_add_u32 v{vXR}, s{sRSLOT}, v{vXR0}
    v_add_u32 v{vWR}, s{sRSLOT}, v{vWR0}""")
    beg = g1_dma_begin(NT)
    A("\n".join(merge(g1_mfmas(NT, 1), g1_reads(NT, 0, 0) + ["\n".join(beg[:7]), "\n".join(beg[7:])] + parts[0])))
    skip = label("Lsk")
    A(f"""s_lshl_b32 s92, s{sW}, 8
    s_or_b32 s92, s92, s{sCNT}
    s_cmp_lg_u32 s92, 1
    s_cbranch_scc1 {skip}""")
    get_nonce()
    signal(f"s{sFL0}", 4)
    A(f"""{skip}:
    s_add_u32 s{sCNT}, s{sCNT}, 1
    s_cmp_lt_u32 s{sCNT}, 10
    s_cbranch_scc1 {top}""")


def g1_epilogue(NT):
    A(f"""s_lshr_b32 s92, s{sROW0}, 4
    s_lshr_b32 s93, s{sW}, 1
    s_lshl_b32 s93, s93, 1
    s_add_u32 s92, s92, s93
    s_mul_i32 s92, s92, 54
    s_lshl_b32 s93, s{sUNIT}, 1
    s_add_u32 s92, s92, s93
    s_and_b32 s93, s{sW}, 1
    s_add_u32 s92, s92, s93
    s_lshl_b32 s92, s92, 10
    s_add_u32 s92, s92, {HWS}
    v_bfe_u32 v4, v{vLANE}, 4, 1
    v_mul_u32_u24 v4, {54*1024}, v4
    v_lshrrev_b32 v5, 5, v{vLANE}
    v_lshl_add_u32 v4, v5, 8, v4
    v_and_b32 v5, 15, v{vLANE}
    v_lshl_add_u32 v4, v5, 4, v4
    v_add_u32 v4, s92, v4
    s_mov_b32 s94, 0xbfb8aa3b
    s_mov_b32 s95, 0xbfb8aa3b
    s_mov_b32 s98, 1.0
    s_mov_b32 s99, 1.0
    s_waitcnt lgkmcnt(0)""")
    T = G1_F
    for b in range(NT):
        A(f"s_mov_b32 s93, {b*4*54*1024}")
        for m in range(2):
            a = G1_ACC + 16 * (2 * b + m)
            t = T + 12 * m
            for p in range(4):
                A(f"v_pk_mul_f32 v[{t+2*p}:{t+2*p+1}], v[{a+2*p}:{a+2*p+1}], s[94:95]")
            for e in range(8):
                A(f"v_exp_f32 v{t+e}, v{t+e}")
            for p in range(4):
                A(f"v_pk_mul_f32 v[{a+2*p}:{a+2*p+1}], v[{a+2*p}:{a+2*p+1}], v[{a+8+2*p}:{a+8+2*p+1}]")
            for p in range(4):
                A(f"v_pk_add_f32 v[{t+2*p}:{t+2*p+1}], v[{t+2*p}:{t+2*p+1}], s[98:99]")
            for e in range(8):
                A(f"v_rcp_f32 v{t+e}, v{t+e}")
            A("s_nop 0")
            for p in range(4):
                A(f"v_pk_mul_f32 v[{a+2*p}:{a+2*p+1}], v[{a+2*p}:{a+2*p+1}], v[{t+2*p}:{t+2*p+1}]")
            for p in range(4):
                A(f"v_cvt_pk_bf16_f32 v{t+8+p}, v{a+2*p}, v{a+2*p+1}")
            A(f"buffer_store_dwordx4 v[{t+8}:{t+11}], v4, {srd(WS_)}, s93 offen offset:{512*m} sc1")


def h_signal():
    l = label("Lhs")
    A(f"""s_waitcnt vmcnt(0)
    s_barrier""")
    get_nonce()
    A(f"""s_cmp_lg_u32 s{sW}, 0
    s_cbranch_scc1 {l}
    s_mul_i32 s92, s{sHF}, 27
    s_add_u32 s92, s92, s{sUNIT}
    s_mul_i32 s92, s92, 5
    s_add_u32 s92, s92, s{sSEG}
    s_lshl_b32 s92, s92, 7
    s_add_u32 s92, s92, {FLH}""")
    signal("s92", 4)
    A(f"{l}:")


P0_LDS = 3 * (3 * 8320 + 16896)
PK, PV, PC, PP, PO = 72, 100, 116, 132, 150


def p0_loads():
    A(f"""s_and_b32 s92, s{sIDX}, 15
    s_lshl_b32 s92, s92, 7
    s_lshr_b32 s93, s{sIDX}, 4
    v_lshrrev_b32 v4, 3, v0
    v_lshlrev_b32 v4, 2, v4
    v_add_u32 v4, s92, v4
    v_and_b32 v5, 7, v0
    v_lshlrev_b32 v6, 4, v5
    s_lshl_b32 s94, s93, 7
    v_add_u32 v6, s94, v6
    s_movk_i32 s95, 1280
    v_mad_u32_u24 v4, v4, s95, v6
    v_subrev_u32 v7, 3840, v4
    v_subrev_u32 v8, 2560, v4
    v_subrev_u32 v9, 1280, v4
    v_lshlrev_b32 v10, 6, v5
    s_lshl_b32 s94, s93, 9
    v_add_u32 v10, s94, v10""")
    for i, r in enumerate((7, 8, 9)):
        A(f"buffer_load_dwordx4 v[{PK+4*i}:{PK+4*i+3}], v{r}, {srd(K_)}, 0 offen")
    for i in range(4):
        A(f"buffer_load_dwordx4 v[{PK+12+4*i}:{PK+12+4*i+3}], v4, {srd(K_)}, 0 offen offset:{1280*i}")
    for i in range(4):
        A(f"buffer_load_dwordx4 v[{PC+4*i}:{PC+4*i+3}], v10, {srd(SH_)}, 0 offen offset:{16*i}")
    for i in range(4):
        A(f"buffer_load_dwordx4 v[{PV+4*i}:{PV+4*i+3}], v4, {srd(V_)}, 0 offen offset:{1280*i}")


def p0_compute(n_after):
    A(f"""v_and_b32 v5, 7, v0
    v_lshrrev_b32 v4, 3, v0
    v_lshl_add_u32 v4, v5, 1, v4
    v_and_b32 v4, 31, v4
    v_lshlrev_b32 v4, 3, v4
    v_lshl_add_u32 v4, v5, 11, v4
    v_add_u32 v11, {P0_LDS}, v4
    s_mov_b32 s92, 0x05040100
    s_mov_b32 s93, 0x07060302
    s_waitcnt vmcnt({n_after})""")
    for ch in range(8):
        d, hi = ch >> 1, ch & 1
        sel = "s93" if hi else "s92"
        t = PP + 9 * (ch & 1) * 0
        for r in range(1, 7):
            A(f"v_perm_b32 v{t+r-1}, v{PK+4*(r-1)+d}, v{PK+4*r+d}, {sel}")
        c01, c23 = PC + 2 * ch, PC + 2 * ch + 1
        for s in range(4):
            A(f"v_dot2_f32_bf16 v{t+6+s}, v{t+(s+3)-1}, v{c01}, 0")
        for s in range(4):
            A(f"v_dot2_f32_bf16 v{t+6+s}, v{t+(s+1)-1}, v{c23}, v{t+6+s}")
        for s in range(4):
            if hi:
                A(f"v_and_b32 v{t+10+s}, 0xffff0000, v{PV+4*s+d}")
            else:
                A(f"v_lshlrev_b32 v{t+10+s}, 16, v{PV+4*s+d}")
        for s in range(4):
            A(f"v_mul_f32 v{t+10+s}, v{t+10+s}, v{t+6+s}")
        o = PO + 2 * ch
        A(f"v_cvt_pk_bf16_f32 v{o}, v{t+10}, v{t+11}")
        A(f"v_cvt_pk_bf16_f32 v{o+1}, v{t+12}, v{t+13}")
        A(f"ds_write_b64 v11, v[{o}:{o+1}] offset:{256*ch}")
    A(f"""v_lshrrev_b32 v4, 4, v0
    v_and_b32 v5, 15, v0
    v_lshrrev_b32 v6, 7, v0
    v_add_u32 v6, v6, v5
    v_lshlrev_b32 v7, 8, v4
    v_add_u32 v7, {P0_LDS}, v7""")
    for i in range(4):
        A(f"""v_add_u32 v8, {2*i}, v6
        v_and_b32 v8, 15, v8
        v_lshl_add_u32 v{12+i}, v8, 4, v7""")
    A(f"""s_lshr_b32 s92, s{sIDX}, 4
    s_lshl_b32 s92, s92, 18
    s_and_b32 s93, s{sIDX}, 15
    s_lshl_b32 s93, s93, 8
    s_add_u32 s92, s92, s93
    v_lshlrev_b32 v4, 12, v4
    v_lshl_add_u32 v4, v5, 4, v4
    v_add_u32 v4, s92, v4
    s_waitcnt lgkmcnt(0)
    s_barrier""")
    for i in range(4):
        A(f"ds_read_b128 v[{PK+4*i}:{PK+4*i+3}], v{12+i} offset:{4096*i}")
    for i in range(4):
        A(f"""s_mov_b32 s92, {KVT + 65536*i}
        s_waitcnt lgkmcnt({3-i})
        buffer_store_dwordx4 v[{PK+4*i}:{PK+4*i+3}], v4, {srd(WS_)}, s92 offen sc1""")
    A(f"""s_lshl_b32 s{sFL0}, s{sIDX}, 7
    s_add_u32 s{sFL0}, s{sFL0}, {FLK}""")


GX, GG = 72, 112


def g_loads():
    A(f"""s_lshl_b32 s92, s{sIDX}, 5
    s_lshl_b32 s93, s{sW}, 3
    s_add_u32 s92, s92, s93
    v_lshrrev_b32 v4, 3, v{vLANE}
    v_add_u32 v12, s92, v4
    v_and_b32 v5, 7, v{vLANE}
    v_lshlrev_b32 v5, 4, v5
    s_movk_i32 s95, 1280
    v_mad_u32_u24 v4, v12, s95, v5""")
    for i in range(10):
        A(f"buffer_load_dwordx4 v[{GX+4*i}:{GX+4*i+3}], v4, {srd(X_)}, 0 offen offset:{128*i}")
        A(f"buffer_load_dwordx4 v[{GG+4*i}:{GG+4*i+3}], v5, {srd(GW_)}, 0 offen offset:{128*i}")


def g_compute(n_after):
    A(f"s_waitcnt vmcnt({n_after})")
    for i in range(40):
        A(f"v_dot2_f32_bf16 v6, v{GX+i}, v{GG+i}, {'0' if i == 0 else 'v6'}")
    A(f"""s_nop 2
    v_add_f32_dpp v7, v6, v6 quad_perm:[1,0,3,2] row_mask:0xf bank_mask:0xf
    s_nop 1
    v_add_f32_dpp v6, v7, v7 quad_perm:[2,3,0,1] row_mask:0xf bank_mask:0xf
    s_nop 1
    v_add_f32_dpp v7, v6, v6 row_half_mirror row_mask:0xf bank_mask:0xf
    v_mul_f32 v7, 0xbfb8aa3b, v7
    v_exp_f32 v7, v7
    s_nop 0
    v_add_f32 v7, 1.0, v7
    v_rcp_f32 v7, v7
    v_lshlrev_b32 v12, 2, v12
    v_add_u32 v12, {GWS}, v12
    s_cmp_lt_u32 s{sIDX}, 64
    s_cselect_b32 s92, 0, {OOB}
    s_mov_b32 exec_lo, 0x01010101
    s_mov_b32 exec_hi, 0x01010101
    buffer_store_dword v7, v12, {srd(WS_)}, s92 offen sc1
    s_mov_b64 exec, -1
    s_lshl_b32 s{sFL0}, s{sIDX}, 7
    s_add_u32 s{sFL0}, s{sFL0}, {FLG}""")


WAREA = 40960
CS = 4160
UOFF = 4 * CS
W2ST = UOFF + 4608
CV_ACC = 24
CV_F = 56
vCA, vCB, vCU = 17, 18, 19
sCH, sWA = 64, 65


def conv():
    A(f"""s_lshl_b32 s{sCH}, s{sIDX}, 2
    s_add_u32 s{sCH}, s{sCH}, s{sW}
    s_mul_i32 s{sWA}, s{sW}, {WAREA}
    v_lshlrev_b32 v4, 4, v{vLANE}
    s_lshl_b32 s66, s{sCH}, 12""")
    for phi in range(4):
        for i in range(4):
            A(f"""s_add_u32 m0, s{sWA}, {phi*CS + 48 + 1024*i}
            s_add_u32 s{sTMP}, s66, {1024*i + 16 - 2*phi}
            buffer_load_dwordx4 v4, {srd(SK_)}, s{sTMP} offen lds""")
    A(f"""buffer_load_dwordx4 v[8:11], v{vZERO}, {srd(SK_)}, s66 offen
    s_lshl_b32 s67, s{sCH}, 1
    buffer_load_ushort v20, v{vZERO}, {srd(SD_)}, s67 offen""")
    A(f"""s_lshr_b32 s92, s{sIDX}, 4
    s_lshl_b32 s92, s92, 11
    s_add_u32 s92, s92, {FLK}
    v_and_b32 v5, 15, v{vLANE}
    v_lshlrev_b32 v5, 7, v5
    v_add_u32 v5, s92, v5""")
    poll(5, 6)
    A(f"s_add_u32 s67, s66, {KVT}")
    for i in range(4):
        A(f"buffer_load_dwordx4 v[{CV_F+4*i}:{CV_F+4*i+3}], v4, {srd(WS_)}, s67 offen offset:{1024*i} sc1")
    Z = CV_F + 16
    A(f"""v_mov_b32 v{Z}, 0
    v_mov_b32 v{Z+1}, 0
    v_mov_b32 v{Z+2}, 0
    v_mov_b32 v{Z+3}, 0
    v_lshlrev_b32 v{Z+4}, 16, v8
    v_alignbit_b32 v{Z+5}, v9, v8, 16
    v_alignbit_b32 v{Z+6}, v10, v9, 16
    v_alignbit_b32 v{Z+7}, v11, v10, 16
    v_mov_b32 v{Z+8}, 0
    v_mov_b32 v{Z+9}, v8
    v_mov_b32 v{Z+10}, v9
    v_mov_b32 v{Z+11}, v10
    v_mov_b32 v{Z+12}, 0
    v_mov_b32 v{Z+13}, v{Z+4}
    v_mov_b32 v{Z+14}, v{Z+5}
    v_mov_b32 v{Z+15}, v{Z+6}
    v_mov_b32 v12, s{sWA}
    v_and_b32 v13, 3, v{vLANE}
    v_mul_u32_u24 v13, {CS}, v13
    v_bfe_u32 v14, v{vLANE}, 2, 1
    v_lshl_add_u32 v13, v14, 4, v13
    v_add_u32 v13, s{sWA}, v13
    v_lshlrev_b32 v14, 3, v{vLANE}
    v_add_u32 v14, s{sWA}, v14
    v_add_u32 v15, s{sWA}, v4
    ds_write_b128 v13, v[{Z}:{Z+3}]
    ds_write_b64 v14, v[{Z}:{Z+1}] offset:{UOFF}
    s_mov_b64 exec, 1
    ds_write_b128 v12, v[8:11] offset:32
    ds_write_b128 v12, v[{Z+4}:{Z+7}] offset:{CS+32}
    ds_write_b128 v12, v[{Z+8}:{Z+11}] offset:{2*CS+32}
    ds_write_b128 v12, v[{Z+12}:{Z+15}] offset:{3*CS+32}
    s_mov_b64 exec, -1""")
    for i in range(4):
        A(f"""s_waitcnt vmcnt({3-i})
        ds_write_b128 v15, v[{CV_F+4*i}:{CV_F+4*i+3}] offset:{UOFF+512+1024*i}""")
    A(f"""v_bfe_u32 v5, v{vLANE}, 2, 2
    v_mul_u32_u24 v5, {CS}, v5
    v_lshrrev_b32 v6, 4, v{vLANE}
    v_lshlrev_b32 v7, 4, v6
    v_sub_u32 v5, v5, v7
    v_and_b32 v8, 3, v{vLANE}
    v_lshl_add_u32 v5, v8, 3, v5
    s_add_u32 s92, s{sWA}, 56
    v_add_u32 v{vCA}, s92, v5
    v_and_b32 v8, 15, v{vLANE}
    v_lshl_add_u32 v7, v8, 5, v7
    s_add_u32 s92, s{sWA}, {UOFF+480}
    v_add_u32 v{vCB}, s92, v7
    v_lshlrev_b32 v8, 5, v8
    v_lshl_add_u32 v8, v6, 3, v8
    s_add_u32 s92, s{sWA}, {UOFF+512}
    v_add_u32 v{vCU}, s92, v8""")
    for r in range(CV_ACC, CV_ACC + 32):
        A(f"v_mov_b32 v{r}, 0")
    A("s_waitcnt lgkmcnt(0)")

    def reads(fs):
        F = CV_F + 64 * fs
        r = []
        for a in range(8):
            r.append(f"ds_read_b64_tr_b16 v[{F+4*a}:{F+4*a+1}], v{vCA} offset:{512*a+8}")
            r.append(f"ds_read_b64_tr_b16 v[{F+4*a+2}:{F+4*a+3}], v{vCA} offset:{512*a}")
            r.append(f"ds_read_b128 v[{F+32+4*a}:{F+32+4*a+3}], v{vCB} offset:{512*a}")
        return r

    def adv():
        return [f"v_add_u32 v{vCA}, 64, v{vCA}", f"v_subrev_u32 v{vCB}, 64, v{vCB}"]

    def mf(fs):
        F = CV_F + 64 * fs
        out = []
        for a in range(8):
            for d in range(8 - a):
                c = CV_ACC + 4 * (a + d)
                out.append(f"v_mfma_f32_16x16x32_bf16 v[{c}:{c+3}], v[{F+4*a}:{F+4*a+3}], v[{F+32+4*d}:{F+32+4*d+3}], v[{c}:{c+3}]")
        return out

    A("\n".join(reads(0) + adv()))
    A("s_mov_b32 s67, 0")
    top = label("Lcv")
    A(f"{top}:")
    for fs in range(2):
        A("s_waitcnt lgkmcnt(0)")
        A("\n".join(merge(mf(fs), reads(1 - fs) + adv(), per=1)))
    A(f"""s_add_u32 s67, s67, 1
    s_cmp_lt_u32 s67, 4
    s_cbranch_scc1 {top}""")
    E = CV_F
    A("s_waitcnt lgkmcnt(0)")
    for cg in range(8):
        A(f"ds_read_b64 v[{E+2*cg}:{E+2*cg+1}], v{vCU} offset:{512*cg}")
    A(f"v_lshlrev_b32 v20, 16, v20")
    for cg in range(8):
        c = CV_ACC + 4 * cg
        t = E + 16 + 4 * (cg & 1)
        A("s_waitcnt lgkmcnt(7)")
        A(f"""v_lshlrev_b32 v{t}, 16, v{E+2*cg}
        v_and_b32 v{t+1}, 0xffff0000, v{E+2*cg}
        v_lshlrev_b32 v{t+2}, 16, v{E+2*cg+1}
        v_and_b32 v{t+3}, 0xffff0000, v{E+2*cg+1}
        v_fmac_f32 v{c}, v{t}, v20
        v_fmac_f32 v{c+1}, v{t+1}, v20
        v_fmac_f32 v{c+2}, v{t+2}, v20
        v_fmac_f32 v{c+3}, v{t+3}, v20
        v_cvt_pk_bf16_f32 v{c}, v{c}, v{c+1}
        v_cvt_pk_bf16_f32 v{c+1}, v{c+2}, v{c+3}
        ds_write_b64 v{vCU}, v[{c}:{c+1}] offset:{512*cg}""")
    A("s_waitcnt lgkmcnt(0)")
    for i in range(4):
        A(f"ds_read_b128 v[{E+32+4*i}:{E+32+4*i+3}], v15 offset:{UOFF+512+1024*i}")
    A(f"s_add_u32 s67, s66, {Y2T}")
    for i in range(4):
        A(f"""s_waitcnt lgkmcnt({3-i})
        buffer_store_dwordx4 v[{E+32+4*i}:{E+32+4*i+3}], v4, {srd(WS_)}, s67 offen offset:{1024*i} sc1""")
    A(f"""s_waitcnt vmcnt(0)
    s_lshl_b32 s92, s{sCH}, 6
    s_add_u32 s92, s92, {FLY}""")
    signal("s92", 6)


sRR, sU2, sT0, sNT2, sKS0, sHB, sHL, sTAU, sTI, sPT, sLT = 66, 67, 68, 69, 70, 71, 75, 77, 78, 79, 80
G2_H = 24
G2_ACC = 136
vHO, vPW0, vPW = 17, 18, 19
PSTR = 272
YST = 26112
YP = 29440


def g2_setup():
    A(f"""s_mul_i32 s{sRR}, s{sL}, 205
    s_lshr_b32 s{sRR}, s{sRR}, 11
    s_mul_i32 s92, s{sRR}, 10
    s_sub_u32 s{sU2}, s{sL}, s92
    s_mul_i32 s{sT0}, s{sRR}, 5
    s_cmp_gt_u32 s{sRR}, 10
    s_addc_u32 s{sT0}, s{sT0}, 0
    s_cmp_gt_u32 s{sRR}, 11
    s_addc_u32 s{sT0}, s{sT0}, 0
    s_cmp_gt_u32 s{sRR}, 23
    s_addc_u32 s{sT0}, s{sT0}, 0
    s_mov_b32 s{sNT2}, 5
    s_cmp_eq_u32 s{sRR}, 10
    s_addc_u32 s{sNT2}, s{sNT2}, 0
    s_cmp_eq_u32 s{sRR}, 11
    s_addc_u32 s{sNT2}, s{sNT2}, 0
    s_cmp_eq_u32 s{sRR}, 23
    s_addc_u32 s{sNT2}, s{sNT2}, 0
    s_mul_i32 s{sKS0}, s{sW}, 14
    s_cmp_eq_u32 s{sW}, 3
    s_subb_u32 s{sKS0}, s{sKS0}, 0
    s_mul_i32 s{sWA}, s{sW}, {WAREA}""")


def w2_stage():
    A(f"""v_lshrrev_b32 v4, 3, v{vLANE}
    v_mul_u32_u24 v4, {4*1280}, v4
    v_and_b32 v5, 7, v{vLANE}
    v_lshl_add_u32 v4, v5, 4, v4
    s_lshl_b32 s92, s{sU2}, 7
    v_add_u32 v4, s92, v4
    v_bfe_u32 v5, v{vLANE}, 2, 2
    v_mul_u32_u24 v5, 1056, v5
    v_lshrrev_b32 v6, 5, v{vLANE}
    v_bfe_u32 v7, v{vLANE}, 4, 1
    v_lshl_add_u32 v6, v6, 2, v7
    v_lshl_add_u32 v5, v6, 7, v5
    v_and_b32 v6, 3, v{vLANE}
    v_lshl_add_u32 v5, v6, 3, v5
    s_add_u32 s93, s{sWA}, {W2ST}
    v_add_u32 v5, s93, v5
    s_mul_i32 s94, s{sKS0}, {32*1280}
    s_add_u32 s95, s94, {13*32*1280}
    s_cmp_ge_u32 s{sW}, 2
    s_cselect_b32 s95, {OOB}, s95""")

    def dma(k):
        for i in range(4):
            base, off = ("s95", i * 1280) if k == 13 else ("s94", (k * 32 + i) * 1280)
            A(f"""s_add_u32 m0, s93, {(k & 3)*4224 + i*1056}
            s_add_u32 s{sTMP}, {base}, {off}
            buffer_load_dwordx4 v4, {srd(W2_)}, s{sTMP} offen lds""")
    for k in range(4):
        dma(k)
    for k in range(14):
        A(f"s_waitcnt vmcnt({4*min(3, 13-k)})")
        for dt in range(4):
            for sec in range(2):
                r = 16 * k + 4 * dt + 2 * sec
                A(f"ds_read_b64_tr_b16 a[{r}:{r+1}], v5 offset:{(k & 3)*4224 + sec*256 + dt*32}")
        if k + 4 < 14:
            A("s_waitcnt lgkmcnt(0)")
            dma(k + 4)
    A("s_waitcnt lgkmcnt(0)")


def g2_hoff():
    return [
        f"s_add_u32 s92, s{sT0}, s{sTAU}",
        f"s_mul_i32 s92, s92, 54",
        f"s_add_u32 s92, s92, s{sKS0}",
        f"s_lshl_b32 s92, s92, 10",
        f"s_add_u32 s92, s92, {HWS}",
        f"s_cmp_ge_u32 s{sLT}, s{sNT2}",
        f"s_cselect_b32 s{sHB}, {OOB}, s92",
        f"s_add_u32 s{sHB+1}, s{sHB}, 4096",
        f"s_add_u32 s{sHB+2}, s{sHB}, 8192",
        f"s_add_u32 s{sHB+3}, s{sHB}, 12288",
        f"s_cmp_ge_u32 s{sW}, 2",
        f"s_cselect_b32 s{sHL}, {OOB}, s{sHB+3}",
        f"s_add_u32 s{sLT}, s{sLT}, 1",
        f"s_add_u32 s{sTAU}, s{sTAU}, 1",
        f"s_cmp_eq_u32 s{sTAU}, s{sNT2}",
        f"s_cselect_b32 s{sTAU}, 0, s{sTAU}",
    ]


def g2_hload(st, k):
    r = G2_H + 56 * st + 4 * k
    so = f"s{sHL}" if k == 13 else f"s{sHB + (k >> 2)}"
    return f"buffer_load_dwordx4 v[{r}:{r+3}], v{vHO}, {srd(WS_)}, {so} offen offset:{(k & 3)*1024} sc1"


def g2_pwrite(st):
    out = [f"s_mul_i32 s92, s{sPT}, {16*PSTR}",
           f"v_add_u32 v{vPW}, s92, v{vPW0}",
           f"s_add_u32 s{sPT}, s{sPT}, 1",
           f"s_cmp_eq_u32 s{sPT}, s{sNT2}",
           f"s_cselect_b32 s{sPT}, 0, s{sPT}"]
    out = ["\n".join(out)]
    for dt in range(4):
        a = G2_ACC + 16 * st + 4 * dt
        out.append(f"ds_write_b128 v{vPW}, v[{a}:{a+3}] offset:{64*dt}")
    return out


def gemm2():
    A(f"""s_lshl_b32 s92, s{sT0}, 4
    s_add_u32 s93, s{sT0}, s{sNT2}
    s_lshl_b32 s93, s93, 4
    s_sub_u32 s93, s93, 1
    v_mov_b32 v4, s92
    v_mov_b32 v5, s93
    v_and_b32 v6, 1, v{vLANE}
    v_cmp_eq_u32 vcc, 1, v6
    s_nop 1
    v_cndmask_b32 v4, v4, v5, vcc
    v_lshrrev_b32 v5, 10, v4
    v_and_b32 v4, 1023, v4
    v_lshrrev_b32 v6, 6, v4
    v_mul_u32_u24 v6, 43, v6
    v_lshrrev_b32 v6, 7, v6
    v_min_u32 v6, 4, v6
    v_lshrrev_b32 v7, 8, v4
    v_lshrrev_b32 v8, 1, v{vLANE}
    v_min_u32 v8, 26, v8
    v_cmp_gt_u32 vcc, 20, v8
    s_nop 1
    v_cndmask_b32 v6, v7, v6, vcc
    v_mad_u32_u24 v8, v5, 27, v8
    v_mad_u32_u24 v8, v8, 5, v6
    v_lshlrev_b32 v8, 7, v8
    v_add_u32 v8, {FLH}, v8
    v_lshlrev_b32 v{vHO}, 4, v{vLANE}
    v_and_b32 v4, 15, v{vLANE}
    v_mul_u32_u24 v4, {PSTR}, v4
    v_lshrrev_b32 v5, 4, v{vLANE}
    v_lshl_add_u32 v4, v5, 4, v4
    v_add_u32 v{vPW0}, s{sWA}, v4
    s_cmp_ge_u32 s{sU2}, s{sNT2}
    s_cselect_b32 s92, s{sNT2}, 0
    s_sub_u32 s{sTAU}, s{sU2}, s92
    s_mov_b32 s{sPT}, s{sTAU}
    s_mov_b32 s{sLT}, 0
    s_mov_b32 s{sTI}, 0""")
    poll(8, 6)
    stamp(5)
    for st in range(2):
        A("\n".join(g2_hoff()))
        for k in range(14):
            A(g2_hload(st, k))
    top, mid, done0, done1, fin = label("Lg2"), label("Lg2m"), label("Lg2d"), label("Lg2e"), label("Lg2f")

    def tile(st, write_prev):
        A("\n".join(g2_hoff()))
        pw = g2_pwrite(1 - st) if write_prev else []
        for k in range(14):
            A("s_waitcnt vmcnt(27)")
            h = G2_H + 56 * st + 4 * k
            for dt in range(4):
                a = G2_ACC + 16 * st + 4 * dt
                c = "0" if k == 0 else f"v[{a}:{a+3}]"
                A(f"v_mfma_f32_16x16x32_bf16 v[{a}:{a+3}], a[{16*k+4*dt}:{16*k+4*dt+3}], v[{h}:{h+3}], {c}")
                if k in (2, 3) and pw and dt < 3:
                    A(pw.pop(0))
            A(g2_hload(st, k))
        assert not pw

    tile(0, False)
    A(f"{top}:")
    tile(1, True)
    A(f"""s_add_u32 s{sTI}, s{sTI}, 2
    s_cmp_eq_u32 s{sTI}, s{sNT2}
    s_cbranch_scc1 {done1}""")
    tile(0, True)
    A(f"""s_add_u32 s92, s{sTI}, 1
    s_cmp_lg_u32 s92, s{sNT2}
    s_cbranch_scc1 {top}
    s_nop 7""")
    A("\n".join(g2_pwrite(0)))
    A(f"""s_branch {fin}
    {done1}:
    s_nop 7""")
    A("\n".join(g2_pwrite(1)))
    A(f"{fin}:")
    stamp(6)


def final():
    A(f"""s_lshl_b32 s92, s{sU2}, 6
    s_lshl_b32 s93, s{sW}, 4
    s_add_u32 s81, s92, s93
    v_and_b32 v4, 15, v{vLANE}
    v_add_u32 v5, s81, v4
    v_lshlrev_b32 v5, 6, v5
    v_add_u32 v5, {FLY}, v5
    s_lshr_b32 s92, s{sT0}, 1
    s_add_u32 s93, s{sT0}, s{sNT2}
    s_sub_u32 s93, s93, 1
    s_lshr_b32 s93, s93, 1
    v_add_u32 v6, s92, v4
    v_min_u32 v6, s93, v6
    v_lshlrev_b32 v6, 7, v6
    v_add_u32 v6, {FLG}, v6
    v_cmp_lt_u32 vcc, 31, v{vLANE}
    s_nop 1
    v_cndmask_b32 v8, v5, v6, vcc""")
    poll(8, 6)
    YL = 24
    A(f"""s_lshl_b32 s92, s81, 12
    s_lshl_b32 s93, s{sT0}, 5
    s_add_u32 s92, s92, s93
    s_add_u32 s92, s92, {Y2T}
    s_add_u32 s94, s{sWA}, {YST}
    s_lshl_b32 s95, s{sNT2}, 5
    v_mov_b32 v12, {OOB}""")
    for i in range(3):
        A(f"""v_add_u32 v4, {64*i}, v{vLANE}
        v_mul_u32_u24 v5, 171, v4
        v_lshrrev_b32 v5, 11, v5
        v_mul_u32_u24 v6, 12, v5
        v_sub_u32 v6, v4, v6
        v_lshlrev_b32 v6, 4, v6
        v_lshl_add_u32 v7, v5, 12, v6
        v_cmp_gt_u32 vcc, s95, v6
        v_mul_u32_u24 v5, 208, v5
        v_add3_u32 v{9+i}, v5, v6, s94
        v_cndmask_b32 v7, v12, v7, vcc
        buffer_load_dwordx4 v[{YL+4*i}:{YL+4*i+3}], v7, {srd(WS_)}, s92 offen sc1""")
    QL, GL = 40, 52
    A(f"""v_lshrrev_b32 v4, 3, v0
    v_and_b32 v5, 7, v0
    s_lshl_b32 s92, s{sT0}, 4
    v_add_u32 v6, s92, v4
    v_lshlrev_b32 v7, 2, v6
    v_add_u32 v7, {GWS}, v7
    s_movk_i32 s93, 1280
    v_lshlrev_b32 v8, 4, v5
    v_mad_u32_u24 v6, v6, s93, v8
    s_lshl_b32 s92, s{sU2}, 7
    v_add_u32 v20, s92, v6
    s_lshr_b32 s92, s{sW}, 1
    s_add_u32 s92, s92, 5
    s_cmp_gt_u32 s92, s{sNT2}
    s_cselect_b32 s85, {OOB}, 0""")
    for p in range(3):
        A(f"""s_mov_b32 s{82+p}, {32*1280*p}
        buffer_load_dwordx4 v[{QL+4*p}:{QL+4*p+3}], v20, {srd(X_)}, s{82+p} offen
        buffer_load_dword v{GL+p}, v7, {srd(WS_)}, {'s85' if p == 2 else '0'} offen offset:{128*p} sc1""")
    A(f"""v_mul_u32_u24 v21, {PSTR}, v4
    v_lshl_add_u32 v21, v5, 5, v21
    v_lshrrev_b32 v6, 1, v5
    v_mul_u32_u24 v6, {WAREA}, v6
    v_lshl_add_u32 v6, v4, 5, v6
    v_and_b32 v8, 1, v5
    v_lshl_add_u32 v22, v8, 4, v6
    v_add_u32 v23, {2*WAREA}, v21""")
    for i in range(3):
        A(f"""s_waitcnt vmcnt({8-i})
        ds_write_b128 v{9+i}, v[{YL+4*i}:{YL+4*i+3}]""")
    A(f"""v_lshrrev_b32 v4, 2, v{vLANE}
    v_mul_u32_u24 v4, 208, v4
    v_and_b32 v5, 3, v{vLANE}
    v_lshl_add_u32 v4, v5, 3, v4
    v_add_u32 v4, s94, v4
    v_and_b32 v5, 15, v{vLANE}
    v_lshlrev_b32 v5, 5, v5
    v_lshrrev_b32 v6, 4, v{vLANE}
    v_lshl_add_u32 v5, v6, 3, v5
    s_add_u32 s92, s{sWA}, {YP}
    v_add_u32 v5, s92, v5
    s_waitcnt lgkmcnt(0)""")
    for t in range(6):
        A(f"ds_read_b64_tr_b16 v[{YL+2*t}:{YL+2*t+1}], v4 offset:{32*t}")
    for t in range(6):
        A(f"""s_waitcnt lgkmcnt(5)
        ds_write_b64 v5, v[{YL+2*t}:{YL+2*t+1}] offset:{512*t}""")
    A("""s_waitcnt lgkmcnt(0)
    s_barrier""")
    R = 56
    last = label("Lfe")
    for p in range(3):
        if p == 2:
            A(f"""s_cmp_lg_u32 s85, 0
            s_cbranch_scc1 {last}""")
        po = 32 * PSTR * p
        for w in range(4):
            va = 21 if w < 2 else 23
            for hh in range(2):
                A(f"ds_read_b128 v[{R+8*w+4*hh}:{R+8*w+4*hh+3}], v{va} offset:{po + (w & 1)*WAREA + 16*hh}")
        A(f"ds_read_b128 v[{R+32}:{R+35}], v22 offset:{YP + 1024*p}")
        A(f"s_waitcnt vmcnt({4-2*p + p}) lgkmcnt(5)")
        for e in range(4):
            A(f"v_pk_add_f32 v[{R+2*e}:{R+2*e+1}], v[{R+2*e}:{R+2*e+1}], v[{R+8+2*e}:{R+8+2*e+1}]")
        U = R + 36
        for e in range(4):
            A(f"v_lshlrev_b32 v{U+2*e}, 16, v{QL+4*p+e}")
            A(f"v_and_b32 v{U+2*e+1}, 0xffff0000, v{QL+4*p+e}")
        A("s_waitcnt lgkmcnt(0)")
        for e in range(4):
            A(f"v_pk_add_f32 v[{R+16+2*e}:{R+16+2*e+1}], v[{R+16+2*e}:{R+16+2*e+1}], v[{R+24+2*e}:{R+24+2*e+1}]")
        for e in range(4):
            A(f"v_lshlrev_b32 v{R+8+2*e}, 16, v{R+32+e}")
            A(f"v_and_b32 v{R+8+2*e+1}, 0xffff0000, v{R+32+e}")
        for e in range(4):
            A(f"v_pk_add_f32 v[{R+2*e}:{R+2*e+1}], v[{R+2*e}:{R+2*e+1}], v[{R+16+2*e}:{R+16+2*e+1}]")
        for e in range(8):
            A(f"v_fma_f32 v{U+e}, v{U+e}, v{R+8+e}, -v{R+e}")
        for e in range(8):
            A(f"v_fmac_f32 v{R+e}, v{GL+p}, v{U+e}")
        O = R + 44 + 4 * p
        for e in range(4):
            A(f"v_cvt_pk_bf16_f32 v{O+e}, v{R+2*e}, v{R+2*e+1}")
        A(f"buffer_store_dwordx4 v[{O}:{O+3}], v20, {srd(O_)}, s{82+p} offen")
    A(f"{last}:")


def nonce_load():
    A(f"buffer_load_dwordx2 v[{vNON}:{vNON+1}], v{vZERO}, {srd(DB_)}, 0 offen sc1")


prologue()
A("""s_cmp_lt_u32 s100, 4
s_cbranch_scc0 Lheavy""")
p0_loads()
g1_addr_setup(3)
g1_prologue_dma(3)
p0_compute(23)
nonce_load()
stamp(1)
g1_loop(3, 5 + (1 if STAMP else 0) * 0)
stamp(2)
g1_epilogue(3)
h_signal()
stamp(3)
conv()
A("s_branch Lg2start")
A("Lheavy:")
g_loads()
g1_addr_setup(4)
g1_prologue_dma(4)
g_compute(27)
nonce_load()
stamp(1)
g1_loop(4, 2)
stamp(2)
g1_epilogue(4)
h_signal()
stamp(3)
A("Lg2start:")
A(f"""s_cmp_ge_u32 s{sL}, 250
s_cbranch_scc1 Lend""")
stamp(4)
g2_setup()
w2_stage()
gemm2()
final()
stamp(7)
A("Lend:")
A("s_endpgm")

hdr = open(f"cdna_kernels/{NAME}.s.ref").read().split("\n")
head = [l for l in hdr if l.startswith(";") and "@launch" not in l]
text = "\n".join(head) + f"""
; @launch grid=(256,1,1) block=(256,1,1) lds=163840
.amdgcn_target "amdgcn-amd-amdhsa--gfx950"
.text
.globl {NAME}_kernel
.p2align 8
.type {NAME}_kernel,@function
{NAME}_kernel:
""" + "\n".join(lines) + f"""
.section .rodata,"a"
.p2align 6
.amdhsa_kernel {NAME}_kernel
  .amdhsa_next_free_vgpr 512
  .amdhsa_next_free_sgpr 102
  .amdhsa_accum_offset 256
  .amdhsa_group_segment_fixed_size 0
  .amdhsa_kernarg_size 112
  .amdhsa_user_sgpr_count 2
  .amdhsa_user_sgpr_kernarg_segment_ptr 1
  .amdhsa_system_sgpr_workgroup_id_x 1
.end_amdhsa_kernel
"""
open(OUT, "w").write(text)
print("wrote", OUT, len(lines), "lines")
```

```python
import sys

NAME = "gated_mix__ssm_conv_h3__glu_gated_swiglu__prompt"
OUT = sys.argv[1] if len(sys.argv) > 1 else f"cdna_kernels/{NAME}.s"
OPT = set(sys.argv[2:])
STAMP = "stamp" in OPT


def optv(name, default):
    for o in OPT:
        if o.startswith(name + "="):
            return int(o.split("=")[1])
    return default


KVT = 0x000000
Y2T = 0x280000
HWS = 0x500000
GWS = 0xBC0000
FLK = 0xBD0000
FLG = 0xBD8000
FLH = 0xBE0000
FLY = 0xBF0000
WSN = 0xC00000
STP = 0xC00000
OOB = 0x7F000000
LDS_OOB = 0x30000

sW = 3
X_, W1_, W3_, W2_, WS_, K_, V_, SK_, O_, SH_, GW_, DB_, SD_ = [4 + 4 * i for i in range(13)]
sN = 56
sL, sUNIT, sSEG, sROW0, sIDX, sHF = 58, 59, 60, 61, 62, 63
sKC, sDX, sDW, sDSx, sDSw, sDSLOT, sRSLOT, sCNT, sXW, sWW, sFL0, sISS, sTMP = range(64, 77)
sCHO, sHBASE, sRBASE, sW2O, sW2L, sU2, sT0, sNT2, sKS0, sWA, sFLH, sFLY, sLIGHT, sYOFF, sG2 = range(77, 92)
sHB, sHL, sTAU, sTI, sPT, sLT, sYOK, sQ1, sQ2 = 64, 68, 69, 70, 71, 72, 73, 74, 75

vLANE, vNON, vZERO = 1, 2, 16
vXD, vWD, vXR0, vWR0, vXR, vWR = 17, 18, 19, 20, 21, 22
vHS, vLIN, vW2D, vW2R, vCA, vCB, vCU, vUL, vD, vFH, vPW0, vPW, vFK, vPD, vFY, vW2R2 = \
    23, 24, 25, 26, 27, 28, 29, 30, 31, 32, 33, 34, 35, 36, 38, 39
vXDb = (17, 114, 115, 126)
vWDb = (18, 127)
vPF = 13
G1_F = 40
G1_ACC = 128
CV_ACC = 40
CV_F = 72
G2_H = (200, 72)
G2_ACC = 136
FQ, FG, FYL, FA = 168, 180, 184, 196


def srd(r):
    return f"s[{r}:{r+3}]"


lines = []
vm = {"n": 0, "tags": {}}
lg = {"n": 0, "tags": {}}


def A(s):
    if isinstance(s, (list, tuple)):
        for x in s:
            A(x)
        return
    for l in s.split("\n"):
        l = l.strip()
        if not l:
            continue
        if l.startswith("@vm"):
            parts = l.split()
            n = min(vm["n"] - vm["tags"][parts[1]], 63)
            extra = " lgkmcnt(0)" if len(parts) > 2 else ""
            l = f"s_waitcnt vmcnt({n}){extra}"
        elif l.startswith("@lg"):
            n = min(lg["n"] - lg["tags"][l.split()[1]], 15)
            l = f"s_waitcnt lgkmcnt({n})"
        elif l.startswith("ds_"):
            lg["n"] += 1
            if ";@" in l:
                l, t = l.split(";@")
                lg["tags"][t.strip()] = lg["n"]
                l = l.strip()
        elif l.startswith("@tag"):
            vm["tags"][l.split()[1]] = vm["n"]
            continue
        elif l.startswith("buffer_"):
            if ";@nc" in l:
                l = l.split(";@nc")[0].strip()
            else:
                vm["n"] += 1
                if ";@" in l:
                    l, t = l.split(";@")
                    vm["tags"][t.strip()] = vm["n"]
                    l = l.strip()
        if l.startswith("buffer_") and l.endswith(" lds") and " m0," in lines[-1]:
            lines.append("    s_nop 0")
        lines.append(("" if l.endswith(":") else "    ") + l)


LG0 = "s_waitcnt lgkmcnt(0)"
_lab = [0]


def L(s):
    return [x.strip() for x in s.split("\n") if x.strip()]


def label(p="L"):
    _lab[0] += 1
    return f"{p}{_lab[0]}"


def cost(item):
    c = 0
    for l in item.split("\n"):
        l = l.strip()
        if not l or l.startswith("@tag") or l.endswith(":"):
            continue
        if l.startswith("ds_write_b128"):
            c += 26
        elif l.startswith("ds_write"):
            c += 14
        elif l.startswith("buffer_"):
            c += 12
        elif l.startswith(("ds_", "v_exp", "v_rcp")):
            c += 8
        else:
            c += 4
    return c


def weave(main, fill, budget):
    out = []
    fill = list(fill)
    for i, m in enumerate(main):
        out.append(m)
        left = len(main) - i
        tot = sum(cost(f) for f in fill)
        b = max(budget, tot / left)
        used = 0
        while fill and (used == 0 or used + cost(fill[0]) <= b):
            used += cost(fill[0])
            out.append(fill.pop(0))
    out += fill
    return out


def zipf(a, b):
    out = []
    a, b = list(a), list(b)
    while a or b:
        if a:
            out.append(a.pop(0))
        if b:
            out.append(b.pop(0))
    return out


def spread(main, fill):
    out = []
    n, m = len(main), len(fill)
    k = 0
    for i, x in enumerate(main):
        while k < m and k * n <= i * m:
            out.append(fill[k])
            k += 1
        out.append(x)
    out += fill[k:]
    return out


def stamp(i):
    if not STAMP:
        return
    l = label("Lst")
    A(f"""s_cmp_lg_u32 s{sW}, 0
    s_cbranch_scc1 {l}
    s_memrealtime s[100:101]
    s_waitcnt lgkmcnt(0)
    v_mov_b32 v10, s100
    s_memtime s[100:101]
    s_waitcnt lgkmcnt(0)
    v_mov_b32 v11, s100
    s_lshl_b32 s100, s{sL}, 7
    s_add_u32 s100, s100, {STP + 8 * i}
    v_mov_b32 v12, s100
    s_mov_b64 exec, 1
    buffer_store_dwordx2 v[10:11], v12, {srd(WS_)}, 0 offen ;@nc
    s_mov_b64 exec, -1
    {l}:""")


def itdump(r=14):
    if "itst" not in OPT:
        return
    l = label("Lst")
    A(f"""s_cmp_lg_u32 s{sW}, 0
    s_cbranch_scc1 {l}
    s_lshl_b32 s100, s{sL}, 7
    s_add_u32 s100, s100, {STP + 0x8000}
    v_lshlrev_b32 v12, 3, v{vLANE}
    v_add_u32 v12, s100, v12
    s_mov_b64 exec, 0xffff
    buffer_store_dwordx2 v[{r}:{r+1}], v12, {srd(WS_)}, 0 offen ;@nc
    s_mov_b64 exec, -1
    {l}:""")


TPR = [24, 26, 28, 30, 40, 42, 44, 46]


def tp(i):
    A(f"s_memtime s[{TPR[i]}:{TPR[i]+1}]")


def tpdump():
    if not (OPT & {"tpe", "tpc", "tp8"}):
        return
    A(LG0)
    for i in range(8):
        A(f"v_writelane_b32 v15, s{TPR[i]}, {i}")
    OPT.add("itst")
    itdump()
    OPT.remove("itst")


def get_nonce():
    lp, dn = label("Lnp"), label("Lnd")
    return f"""s_mov_b32 s96, 0
    {lp}:
    v_readfirstlane_b32 s{sN}, v{vNON}
    v_readfirstlane_b32 s{sN+1}, v{vNON+1}
    s_nop 3
    s_cmp_lg_u32 s{sN}, 0
    s_cbranch_scc1 {dn}
    s_sleep 2
    buffer_load_dwordx2 v[{vNON}:{vNON+1}], v{vZERO}, {srd(DB_)}, 0 offen sc1 ;@nc
    s_waitcnt vmcnt(0)
    s_add_u32 s96, s96, 1
    s_cmp_lt_u32 s96, 0x8000
    s_cbranch_scc1 {lp}
    {dn}:"""


def poll_issue(vaddr, tag):
    return f"buffer_load_dwordx2 v[{vPD}:{vPD+1}], v{vaddr}, {srd(WS_)}, 0 offen sc1 ;@{tag}"


def poll_check(vaddr, tag):
    lp, dn = label("Lpp"), label("Lpd")
    w = "" if tag == "done" else (f"@vm {tag}" if tag else "s_waitcnt vmcnt(0)")
    return f"""s_mov_b32 s96, 0
    {w}
    {lp}:
    v_cmp_ne_u64 vcc, s[{sN}:{sN+1}], v[{vPD}:{vPD+1}]
    s_nop 3
    s_cmp_eq_u64 vcc, 0
    s_cbranch_scc1 {dn}
    s_sleep 1
    buffer_load_dwordx2 v[{vPD}:{vPD+1}], v{vaddr}, {srd(WS_)}, 0 offen sc1 ;@nc
    s_waitcnt vmcnt(0)
    s_add_u32 s96, s96, 1
    s_cmp_lt_u32 s96, 0x8000
    s_cbranch_scc1 {lp}
    {dn}:"""


def signal(soff):
    return f"""v_mov_b32 v4, s{sN}
    v_mov_b32 v5, s{sN+1}
    v_mov_b32 v6, {soff}
    s_mov_b64 exec, 1
    buffer_store_dwordx2 v[4:5], v6, {srd(WS_)}, 0 offen sc1 ;@nc
    s_mov_b64 exec, -1"""


def wave0_signal(soff):
    l = label("Lsg")
    return f"""s_cmp_lg_u32 s{sW}, 0
    s_cbranch_scc1 {l}
    {signal(soff)}
    {l}:"""


def prologue():
    karg = {X_: 0, K_: 8, V_: 16, SH_: 24, SK_: 32, SD_: 40, W1_: 56, W3_: 64, W2_: 72, GW_: 80, O_: 88, DB_: 96, WS_: 104}
    size = {X_: 2621440, K_: 2621440, V_: 2621440, SH_: 5120, SK_: 2621440, SD_: 1280, W1_: 2211840, W3_: 2211840,
            W2_: 2211840, GW_: 1280, O_: 2621440, DB_: 256, WS_: (WSN + 0x10000 if STAMP else WSN)}
    A("""s_cmp_ge_u32 s2, 256
    s_cbranch_scc1 Lend""")
    for r in karg:
        A(f"s_load_dwordx2 s[{r}:{r+1}], s[0:1], {karg[r]}")
    A(f"""v_lshrrev_b32 v4, 6, v0
    v_and_b32 v{vLANE}, 63, v0
    v_mov_b32 v{vZERO}, 0
    v_readfirstlane_b32 s{sW}, v4
    s_and_b32 s92, s2, 7
    s_lshl_b32 s92, s92, 5
    s_lshr_b32 s93, s2, 3
    s_add_u32 s{sL}, s92, s93
    s_lshr_b32 s{sHF}, s{sL}, 7
    s_and_b32 s92, s{sL}, 127
    s_mul_i32 s93, s92, 205
    s_lshr_b32 s93, s93, 10
    s_mul_i32 s94, s93, 5
    s_sub_u32 s94, s92, s94
    s_mul_i32 s95, s94, 192
    s_sub_u32 s96, s92, 100
    s_lshr_b32 s97, s96, 2
    s_add_u32 s97, s97, 20
    s_and_b32 s98, s96, 3
    s_lshl_b32 s99, s98, 8
    s_add_u32 s96, s96, 20
    s_cmp_lt_u32 s92, 100
    s_cselect_b32 s{sUNIT}, s93, s97
    s_cselect_b32 s{sSEG}, s94, s98
    s_cselect_b32 s{sROW0}, s95, s99
    s_cselect_b32 s96, s93, s96
    s_cselect_b32 s{sLIGHT}, s94, 4
    s_lshl_b32 s95, s{sHF}, 10
    s_add_u32 s{sROW0}, s{sROW0}, s95
    s_mul_i32 s95, s{sHF}, 48
    s_add_u32 s96, s96, s95
    s_mul_i32 s95, s{sHF}, 80
    s_lshl_b32 s97, s{sUNIT}, 2
    s_add_u32 s95, s95, s97
    s_add_u32 s95, s95, s{sSEG}
    s_cmp_lt_u32 s{sLIGHT}, 4
    s_cselect_b32 s{sIDX}, s95, s96""")
    for r in karg:
        A(f"""s_mov_b32 s{r+2}, {size[r]}
        s_mov_b32 s{r+3}, 0x20000""")


def nonce_producer():
    l = label("Lnn")
    A(f"""s_or_b32 s92, s{sL}, s{sW}
    s_cmp_lg_u32 s92, 0
    s_cbranch_scc1 {l}
    s_memrealtime s[92:93]
    s_waitcnt lgkmcnt(0)
    s_or_b32 s92, s92, 1
    v_mov_b32 v14, s92
    v_mov_b32 v15, s93
    s_mov_b64 exec, 1
    buffer_store_dwordx2 v[14:15], v{vZERO}, {srd(DB_)}, 0 offen sc1 ;@nc
    s_mov_b64 exec, -1
    {l}:""")


def g1_addr_setup(NT):
    XS = NT * 8320
    rot = optv("rot", 3)
    A(f"""v_lshrrev_b32 v4, 3, v{vLANE}
    v_and_b32 v5, 7, v{vLANE}
    v_lshlrev_b32 v5, 4, v5
    v_and_b32 v6, 1, v4
    v_lshrrev_b32 v7, 1, v4
    v_lshl_add_u32 v8, v7, 4, v6
    s_lshl_b32 s92, s{sW}, 2
    s_add_u32 s92, s92, s{sROW0}
    v_add_u32 v8, s92, v8
    s_movk_i32 s93, 1280
    v_mad_u32_u24 v{vXD}, v8, s93, v5
    v_lshl_add_u32 v8, v7, 2, v6
    s_lshl_b32 s92, s{sW}, 4
    v_add_u32 v8, s92, v8
    s_movk_i32 s93, 3456
    v_mad_u32_u24 v8, v8, s93, v5
    s_lshl_b32 s92, s{sUNIT}, 7
    v_add_u32 v{vWD}, s92, v8
    v_add_u32 v{vWDb[1]}, {2*3456}, v{vWD}
    s_mul_i32 s{sXW}, s{sW}, 2080
    s_mul_i32 s{sWW}, s{sW}, 4224""")
    for b in range(1, NT):
        A(f"v_add_u32 v{vXDb[b]}, {b*64*1280}, v{vXD}")
    if rot == 0:
        A(f"s_mov_b32 s{sKC}, 0")
    elif rot == 1:
        A(f"""s_mul_i32 s{sKC}, s{sSEG}, 3
        s_add_u32 s{sKC}, s{sKC}, s{sUNIT}
        s_mul_i32 s92, s{sKC}, 103
        s_lshr_b32 s92, s92, 10
        s_mul_i32 s92, s92, 10
        s_sub_u32 s{sKC}, s{sKC}, s92""")
    elif rot == 2:
        A(f"""s_add_u32 s{sKC}, s{sSEG}, s{sUNIT}
        s_and_b32 s{sKC}, s{sKC}, 1
        s_mul_i32 s{sKC}, s{sKC}, 5""")
    elif rot == 3:
        A(f"""s_lshr_b32 s{sKC}, s{sL}, 5""")
    A(f"""s_mov_b32 s{sDSLOT}, 0
    s_mov_b32 s{sISS}, 0""")


def g1_read_setup(NT):
    XS = NT * 8320
    return f"""v_bfe_u32 v4, v{vLANE}, 1, 3
    v_mul_u32_u24 v4, 1040, v4
    v_and_b32 v5, 1, v{vLANE}
    v_bfe_u32 v6, v{vLANE}, 4, 1
    v_lshl_add_u32 v5, v6, 1, v5
    v_lshl_add_u32 v4, v5, 7, v4
    v_lshrrev_b32 v6, 5, v{vLANE}
    v_lshl_add_u32 v4, v6, 4, v4
    s_lshr_b32 s92, s{sW}, 1
    s_lshl_b32 s92, s92, 9
    s_add_u32 s92, s92, 16896
    v_add_u32 v{vXR0}, s92, v4
    v_bfe_u32 v4, v{vLANE}, 4, 1
    v_bfe_u32 v5, v{vLANE}, 3, 1
    v_lshl_add_u32 v4, v4, 1, v5
    v_mul_u32_u24 v4, 1056, v4
    v_bfe_u32 v5, v{vLANE}, 2, 1
    v_lshl_add_u32 v5, v6, 2, v5
    v_lshl_add_u32 v4, v5, 7, v4
    v_and_b32 v5, 3, v{vLANE}
    v_lshl_add_u32 v4, v5, 3, v4
    s_and_b32 s92, s{sW}, 1
    s_lshl_b32 s92, s92, 6
    v_add_u32 v{vWR0}, s92, v4
    v_mov_b32 v{vXR}, v{vXR0}
    v_mov_b32 v{vWR}, v{vWR0}
    s_mov_b32 s{sRSLOT}, 0
    s_mov_b32 s{sCNT}, 0"""


def g1_dma_begin(NT):
    S = NT * 8320 + 16896
    return [
        f"s_lshl_b32 s{sDX}, s{sKC}, 7\ns_mul_i32 s{sDW}, s{sKC}, {64*3456}",
        f"s_cmp_ge_u32 s{sISS}, 10\ns_cselect_b32 s{sDX}, {OOB}, s{sDX}\ns_cselect_b32 s{sDW}, {OOB}, s{sDW}\n"
        f"s_cselect_b32 s{sDSLOT}, {LDS_OOB}, s{sDSLOT}",
        f"s_add_u32 s{sDSx}, s{sDSLOT}, s{sXW}\ns_add_u32 s{sDSw}, s{sDSLOT}, s{sWW}",
        f"s_add_u32 s{sISS}, s{sISS}, 1\ns_add_u32 s{sKC}, s{sKC}, 1\ns_cmp_eq_u32 s{sKC}, 10\ns_cselect_b32 s{sKC}, 0, s{sKC}",
        f"s_add_u32 s{sDSLOT}, s{sDSLOT}, {S}\ns_cmp_eq_u32 s{sDSLOT}, {3*S}\ns_cselect_b32 s{sDSLOT}, 0, s{sDSLOT}",
    ]


def g1_dma_list(NT):
    d = []
    for q in range(4):
        mat, i = q >> 1, q & 1
        d.append([f"s_add_u32 m0, s{sDSw}, {q*1056}",
                  f"buffer_load_dwordx4 v{vWDb[i]}, {srd(W3_ if mat else W1_)}, s{sDW} offen lds"])
    for b in range(NT):
        for ii in range(2):
            d.append([f"s_add_u32 m0, s{sDSx}, {16896 + b*8320 + ii*1040 - ii*2560}",
                      f"buffer_load_dwordx4 v{vXDb[b]}, {srd(X_)}, s{sDX} offen offset:{ii*2560} lds"])
    return d


def flat(d):
    return [x for p in d for x in p]


def g1_parts(NT):
    d = g1_dma_list(NT)
    cuts = [0, 2, 5, 8, 10] if len(d) == 10 else [0, 3, 6, 9, 12]
    return [flat(d[cuts[i]:cuts[i + 1]]) for i in range(4)]


def g1_reads(NT, j, fs):
    F = G1_F + 24 * fs
    r = []
    for m in range(2):
        for sec in range(2):
            r.append(f"ds_read_b64_tr_b16 v[{F+4*m+2*sec}:{F+4*m+2*sec+1}], v{vWR} offset:{j*4224 + m*32 + sec*256}")
    for b in range(NT):
        r.append(f"ds_read_b128 v[{F+8+4*b}:{F+8+4*b+3}], v{vXR} offset:{b*8320 + j*32}")
    r[-1] += " ;@g1r"
    return [r[0], r[1], r[4], r[2], r[3]] + r[5:]


def g1_mfmas(NT, fs):
    F = G1_F + 24 * fs
    out = []
    R = "a" if "x_agpr" in OPT else "v"
    for b in range(NT):
        for m in ((1, 0) if ("x_snake" in OPT and b & 1) else (0, 1)):
            a = G1_ACC + 16 * (2 * b + m)
            if "x_m16" in OPT:
                a += 8 * fs
                out.append(f"v_mfma_f32_16x16x32_bf16 {R}[{a}:{a+3}], v[{F+4*m}:{F+4*m+3}], v[{F+8+4*b}:{F+8+4*b+3}], {R}[{a}:{a+3}]")
                a += 4
                out.append(f"v_mfma_f32_16x16x32_bf16 {R}[{a}:{a+3}], v[{F+4*(1-m)}:{F+4*(1-m)+3}], v[{F+8+4*b}:{F+8+4*b+3}], {R}[{a}:{a+3}]")
                continue
            out.append(f"v_mfma_f32_32x32x16_bf16 {R}[{a}:{a+15}], v[{F+4*m}:{F+4*m+3}], v[{F+8+4*b}:{F+8+4*b+3}], {R}[{a}:{a+15}]")
    return out


G1B = 12 if "x_m16" in OPT else 26


def g1_body(NT, fills, midwait, last=False, tail=None, rolled=False):
    S = NT * 8320 + 16896
    adv = [f"s_add_u32 s{sRSLOT}, s{sRSLOT}, {S}\ns_cmp_eq_u32 s{sRSLOT}, {3*S}\ns_cselect_b32 s{sRSLOT}, 0, s{sRSLOT}",
           f"v_add_u32 v{vXR}, s{sRSLOT}, v{vXR0}\nv_add_u32 v{vWR}, s{sRSLOT}, v{vWR0}"]
    for j in range(3):
        if "tp8" in OPT and not rolled and NT == 3:
            tp(j + (4 if last else 0))
        if "itst" in OPT and j == 0:
            A("s_memrealtime s[100:101]\ns_memtime s[98:99]")
        A(LG0 if (j == 0 and (rolled or "itst" in OPT)) else "@lg g1r")
        if "itst" in OPT and j == 0:
            A(f"s_mov_b32 m0, s97\ns_nop 0\nv_writelane_b32 v14, s100, m0\nv_writelane_b32 v15, s98, m0\ns_add_u32 s97, s97, 1")
        A(weave(g1_mfmas(NT, j & 1), g1_reads(NT, j + 1, (j + 1) & 1) + (adv if j == 2 and not last else []) + fills[j], G1B))
    if "tp8" in OPT and not rolled and NT == 3:
        tp(3 + (4 if last else 0))
    A(midwait)
    A("s_barrier")
    m = g1_mfmas(NT, 1)
    A(weave(m[:-1], ([] if last else g1_reads(NT, 0, 0)) + fills[3] + (tail or []), G1B))
    A(m[-1])


def g1_loop(NT):
    D = 2 * NT + 4
    parts = g1_parts(NT)
    A("@vm c0 lg\ns_barrier")
    if "itst" in OPT:
        A("s_mov_b32 s97, 0")
    A(g1_reads(NT, 0, 0))
    if NT == 3:
        A(p0_readback())
    top, sig, back = label("Lg1"), label("Lg1s"), label("Lg1b")
    A(f"{top}:")
    sigchk = f"""s_bitcmp1_b32 {0b01010101}, s{sCNT}
    s_cbranch_scc1 {sig}
    {back}:"""
    cnt = f"s_add_u32 s{sCNT}, s{sCNT}, 1\ns_cmp_lt_u32 s{sCNT}, 8"
    mid = f"s_waitcnt vmcnt({D}) lgkmcnt(0)"
    alt, altb = label("Lg1a"), label("Lg1c")
    f2 = list(parts[3])
    if NT == 3:
        f2.append(f"s_bitcmp1_b32 {0b00100010}, s{sCNT}")
        mid = f"s_cbranch_scc1 {alt}\n{mid}\n{altb}:"
    g1_body(NT, [parts[1], parts[2], f2, ([sigchk] if NT == 3 else []) + g1_dma_begin(NT) + parts[0]],
            mid, tail=[cnt], rolled=True)
    A(f"s_cbranch_scc1 {top}")
    A("@tag c9")
    if NT == 3:
        l1, l4, l6, l5 = label("Lg1t"), label("Lg1t"), label("Lg1t"), label("Lg1t")
        nl = "\n"
        ool.append(f"""{sig}:
        s_cmp_lg_u32 s{sCNT}, 0
        s_cbranch_scc1 {l1}
        buffer_load_dwordx2 v[{vNON}:{vNON+1}], v{vZERO}, {srd(DB_)}, 0 offen sc1 ;@nc
        {p0_stores()}
        s_branch {back}
        {l1}:
        s_cmp_lg_u32 s{sCNT}, 2
        s_cbranch_scc1 {l4}
        {get_nonce()}
        {wave0_signal(f's{sFL0}')}
        s_branch {back}
        {l4}:
        s_cmp_lg_u32 s{sCNT}, 4
        s_cbranch_scc1 {l6}
        {cv_dload()}
        {nl.join(cv_hdma(0))}
        s_branch {back}
        {l6}:
        {poll_issue(vFK, "kp")}
        s_branch {back}
        {alt}:
        s_waitcnt vmcnt({D+4}) lgkmcnt(0)
        s_branch {altb}""")


PFMOD = " nt" if "pfnt" in OPT else (" sc1" if "pfsc1" in OPT else "")
ool = []


def g1_epi_tile(b, m, tag=None):
    a = G1_ACC + 16 * (2 * b + m)
    t = G1_F + 12 * m
    o = []
    for p in range(4):
        o.append(f"v_pk_mul_f32 v[{t+2*p}:{t+2*p+1}], v[{a+2*p}:{a+2*p+1}], s[94:95]")
    for e in range(8):
        o.append(f"v_exp_f32 v{t+e}, v{t+e}")
    for p in range(4):
        o.append(f"v_pk_mul_f32 v[{a+2*p}:{a+2*p+1}], v[{a+2*p}:{a+2*p+1}], v[{a+8+2*p}:{a+8+2*p+1}]")
    for p in range(4):
        o.append(f"v_pk_add_f32 v[{t+2*p}:{t+2*p+1}], v[{t+2*p}:{t+2*p+1}], s[98:99]")
    for e in range(8):
        o.append(f"v_rcp_f32 v{t+e}, v{t+e}")
    o.append(f"s_mov_b32 s93, {b*4*54*1024}")
    for p in range(4):
        o.append(f"v_pk_mul_f32 v[{a+2*p}:{a+2*p+1}], v[{a+2*p}:{a+2*p+1}], v[{t+2*p}:{t+2*p+1}]")
    for p in range(4):
        o.append(f"v_cvt_pk_bf16_f32 v{t+8+p}, v{a+2*p}, v{a+2*p+1}")
    o.append(f"buffer_store_dwordx4 v[{t+8}:{t+11}], v{vHS}, {srd(WS_)}, s93 offen offset:{512*m} sc1" + (f" ;@{tag}" if tag else ""))
    return o


EPI_CONST = """s_mov_b32 s94, 0xbfb8aa3b
s_mov_b32 s95, 0xbfb8aa3b
s_mov_b32 s98, 1.0
s_mov_b32 s99, 1.0
s_nop 7"""

WAREA = 40960
CS = 4160
PSTR = 272
YST = 26112
YP = 29440
L_SLOT = 3 * 8320 + 16896
H_SLOT = 4 * 8320 + 16896
HE = 3 * L_SLOT
HO = L_SLOT + 128
UB = (79872, 75264, 118528, 158848)


def post_setup(light):
    big = 2 * (L_SLOT if light else H_SLOT)
    s = f"""s_lshr_b32 s92, s{sROW0}, 4
    s_lshr_b32 s93, s{sW}, 1
    s_lshl_b32 s93, s93, 1
    s_add_u32 s92, s92, s93
    s_mul_i32 s92, s92, 54
    s_lshl_b32 s93, s{sUNIT}, 1
    s_add_u32 s92, s92, s93
    s_and_b32 s93, s{sW}, 1
    s_add_u32 s92, s92, s93
    s_lshl_b32 s92, s92, 10
    s_add_u32 s92, s92, {HWS}
    v_bfe_u32 v4, v{vLANE}, 4, 1
    v_mul_u32_u24 v4, {54*1024}, v4
    v_lshrrev_b32 v5, 5, v{vLANE}
    v_lshl_add_u32 v4, v5, 8, v4
    v_and_b32 v5, 15, v{vLANE}
    v_lshl_add_u32 v4, v5, 4, v4
    v_add_u32 v{vHS}, s92, v4
    s_mul_i32 s92, s{sHF}, 27
    s_add_u32 s92, s92, s{sUNIT}
    s_mul_i32 s92, s92, 5
    s_add_u32 s92, s92, s{sSEG}
    s_lshl_b32 s92, s92, 7
    s_add_u32 s{sFLH}, s92, {FLH}
    s_mul_i32 s97, s{sL}, 205
    s_lshr_b32 s97, s97, 11
    s_mul_i32 s92, s97, 10
    s_sub_u32 s{sU2}, s{sL}, s92
    s_mul_i32 s{sT0}, s97, 5
    s_cmp_gt_u32 s97, 10
    s_addc_u32 s{sT0}, s{sT0}, 0
    s_cmp_gt_u32 s97, 11
    s_addc_u32 s{sT0}, s{sT0}, 0
    s_cmp_gt_u32 s97, 23
    s_addc_u32 s{sT0}, s{sT0}, 0
    s_mov_b32 s{sNT2}, 5
    s_cmp_eq_u32 s97, 10
    s_addc_u32 s{sNT2}, s{sNT2}, 0
    s_cmp_eq_u32 s97, 11
    s_addc_u32 s{sNT2}, s{sNT2}, 0
    s_cmp_eq_u32 s97, 23
    s_addc_u32 s{sNT2}, s{sNT2}, 0
    s_mul_i32 s{sKS0}, s{sW}, 14
    s_cmp_eq_u32 s{sW}, 3
    s_subb_u32 s{sKS0}, s{sKS0}, 0
    s_mul_i32 s{sWA}, s{sW}, {WAREA}
    ; w2 staging
    v_lshrrev_b32 v4, 3, v{vLANE}
    v_mul_u32_u24 v4, {4*1280}, v4
    v_and_b32 v5, 7, v{vLANE}
    v_lshl_add_u32 v4, v5, 4, v4
    s_lshl_b32 s92, s{sU2}, 7
    v_add_u32 v{vW2D}, s92, v4
    v_bfe_u32 v5, v{vLANE}, 2, 2
    v_mul_u32_u24 v5, 1056, v5
    v_lshrrev_b32 v6, 5, v{vLANE}
    v_bfe_u32 v7, v{vLANE}, 4, 1
    v_lshl_add_u32 v6, v6, 2, v7
    v_lshl_add_u32 v5, v6, 7, v5
    v_and_b32 v6, 3, v{vLANE}
    v_lshl_add_u32 v5, v6, 3, v5
    s_mul_i32 s{sRBASE}, s{sW}, 8448
    s_add_u32 s{sRBASE}, s{sRBASE}, 1024
    v_add_u32 v{vW2R}, s{sRBASE}, v5
    v_add_u32 v{vW2R2}, {big}, v{vW2R}
    s_mul_i32 s{sW2O}, s{sKS0}, {32*1280}
    s_add_u32 s{sW2L}, s{sW2O}, {13*32*1280}
    s_cmp_ge_u32 s{sW}, 2
    s_cselect_b32 s{sW2L}, {OOB}, s{sW2L}
    ; h flags
    s_lshl_b32 s92, s{sT0}, 4
    s_add_u32 s93, s{sT0}, s{sNT2}
    s_lshl_b32 s93, s93, 4
    s_sub_u32 s93, s93, 1
    v_mov_b32 v4, s92
    v_mov_b32 v5, s93
    v_and_b32 v6, 1, v{vLANE}
    v_cmp_eq_u32 vcc, 1, v6
    s_lshr_b32 s92, s92, 3
    s_lshr_b32 s93, s93, 3
    v_cndmask_b32 v4, v4, v5, vcc
    v_lshrrev_b32 v5, 10, v4
    v_and_b32 v4, 1023, v4
    v_lshrrev_b32 v6, 6, v4
    v_mul_u32_u24 v6, 43, v6
    v_lshrrev_b32 v6, 7, v6
    v_min_u32 v6, 4, v6
    v_lshrrev_b32 v7, 8, v4
    v_lshrrev_b32 v8, 1, v{vLANE}
    v_min_u32 v8, 26, v8
    v_cmp_gt_u32 vcc, 20, v8
    v_and_b32 v9, 15, v{vLANE}
    v_add_u32 v9, s92, v9
    v_cndmask_b32 v6, v7, v6, vcc
    v_mad_u32_u24 v8, v5, 27, v8
    v_mad_u32_u24 v8, v8, 5, v6
    v_lshlrev_b32 v8, 7, v8
    v_add_u32 v{vFH}, {FLH}, v8
    v_min_u32 v9, s93, v9
    v_lshlrev_b32 v9, 6, v9
    v_add_u32 v9, {FLG}, v9
    v_lshlrev_b32 v{vLIN}, 4, v{vLANE}
    v_and_b32 v4, 15, v{vLANE}
    v_lshrrev_b32 v6, 4, v{vLANE}
    v_mul_u32_u24 v5, {PSTR}, v4
    v_lshl_add_u32 v5, v6, 4, v5
    v_add_u32 v{vPW0}, s{sWA}, v5
    s_lshl_b32 s92, s{sU2}, 6
    s_lshl_b32 s93, s{sW}, 4
    s_add_u32 s92, s92, s93
    v_add_u32 v5, s92, v4
    v_lshlrev_b32 v5, 6, v5
    v_cmp_lt_u32 vcc, 31, v{vLANE}
    v_add_u32 v5, {FLY}, v5
    s_nop 0
    v_cndmask_b32 v{vFY}, v5, v9, vcc
    s_lshl_b32 s92, s92, 12
    s_lshl_b32 s93, s{sT0}, 5
    s_add_u32 s92, s92, s93
    s_add_u32 s{sYOFF}, s92, {Y2T}
    s_lshr_b32 s92, s{sW}, 1
    s_add_u32 s92, s92, 5
    s_cmp_gt_u32 s92, s{sNT2}
    s_cselect_b32 s{sG2}, {OOB}, 0
    """
    if light:
        s += f"""s_lshl_b32 s92, s{sIDX}, 2
        s_add_u32 s92, s92, s{sW}
        s_lshl_b32 s{sCHO}, s92, 12
        s_lshl_b32 s92, s92, 6
        s_add_u32 s{sFLY}, s92, {FLY}
        s_mul_i32 s{sHBASE}, s{sW}, {2*CS}
        s_mov_b32 s92, {UB[0]}
        s_cmp_eq_u32 s{sW}, 1
        s_cselect_b32 s92, {UB[1]}, s92
        s_cmp_eq_u32 s{sW}, 2
        s_cselect_b32 s92, {UB[2]}, s92
        s_cmp_eq_u32 s{sW}, 3
        s_cselect_b32 s92, {UB[3]}, s92
        v_add_u32 v{vUL}, s92, v{vLIN}
        v_bfe_u32 v5, v{vLANE}, 3, 1
        v_mul_u32_u24 v5, {CS}, v5
        v_bfe_u32 v7, v{vLANE}, 2, 1
        v_mul_u32_u24 v7, {HE - HO}, v7
        v_sub_u32 v5, v5, v7
        v_lshlrev_b32 v7, 4, v6
        v_sub_u32 v5, v5, v7
        v_and_b32 v8, 3, v{vLANE}
        v_lshl_add_u32 v5, v8, 3, v5
        s_add_u32 s93, s{sHBASE}, {HE + 56}
        v_add_u32 v{vCA}, s93, v5
        v_lshl_add_u32 v7, v4, 5, v7
        s_add_u32 s93, s92, 32
        v_add_u32 v{vCB}, s93, v7
        v_lshlrev_b32 v8, 5, v4
        v_lshl_add_u32 v8, v6, 3, v8
        s_add_u32 s93, s92, 512
        v_add_u32 v{vCU}, s93, v8
        s_lshr_b32 s92, s{sIDX}, 4
        s_lshl_b32 s92, s92, 11
        s_add_u32 s92, s92, {FLK}
        v_lshlrev_b32 v5, 7, v4
        v_add_u32 v{vFK}, s92, v5
        s_lshl_b32 s{sFL0}, s{sIDX}, 7
        s_add_u32 s{sFL0}, s{sFL0}, {FLK}"""
    else:
        s += f"""s_lshl_b32 s92, s{sIDX}, 2
        s_add_u32 s92, s92, s{sW}
        s_lshl_b32 s92, s92, 6
        s_add_u32 s{sFLY}, s92, {FLG}"""
    return s


def zero(lo, n):
    return [f"v_mov_b32 v{r}, 0" for r in range(lo, lo + n)]


P0_LDS = 3 * L_SLOT
PK, PV, PC, PP, PO = 40, 68, 84, 100, 116


def p0_addr():
    A(f"""s_and_b32 s92, s{sIDX}, 15
    s_lshl_b32 s92, s92, 7
    s_lshr_b32 s93, s{sIDX}, 4
    v_lshrrev_b32 v4, 3, v0
    v_lshlrev_b32 v4, 2, v4
    v_add_u32 v4, s92, v4
    v_and_b32 v5, 7, v0
    v_lshlrev_b32 v6, 4, v5
    s_lshl_b32 s94, s93, 7
    v_add_u32 v6, s94, v6
    s_movk_i32 s95, 1280
    v_mad_u32_u24 v120, v4, s95, v6
    v_subrev_u32 v121, 3840, v120
    v_subrev_u32 v122, 2560, v120
    v_subrev_u32 v123, 1280, v120
    v_lshlrev_b32 v124, 6, v5
    s_lshl_b32 s94, s93, 9
    v_add_u32 v124, s94, v124""")


def p0_loads():
    for i in range(4):
        A(f"buffer_load_dwordx4 v[{PK+12+4*i}:{PK+12+4*i+3}], v120, {srd(K_)}, 0 offen offset:{1280*i}")
    for i in range(4):
        A(f"buffer_load_dwordx4 v[{PV+4*i}:{PV+4*i+3}], v120, {srd(V_)}, 0 offen offset:{1280*i}")
    for i in range(4):
        A(f"buffer_load_dwordx4 v[{PC+4*i}:{PC+4*i+3}], v124, {srd(SH_)}, 0 offen offset:{16*i}")
    for i in range(3):
        A(f"buffer_load_dwordx4 v[{PK+4*i}:{PK+4*i+3}], v{121+i}, {srd(K_)}, 0 offen" + (" ;@p0" if i == 2 else ""))


def p0_pre():
    s = f"""v_and_b32 v5, 7, v0
    v_lshrrev_b32 v4, 3, v0
    v_lshl_add_u32 v4, v5, 1, v4
    v_and_b32 v4, 31, v4
    v_lshlrev_b32 v4, 3, v4
    v_lshl_add_u32 v4, v5, 11, v4
    v_add_u32 v125, {P0_LDS}, v4
    v_lshrrev_b32 v4, 4, v0
    v_and_b32 v5, 15, v0
    v_lshrrev_b32 v6, 7, v0
    v_add_u32 v6, v6, v5
    v_lshlrev_b32 v7, 8, v4
    v_add_u32 v7, {P0_LDS}, v7
    """
    for i in range(4):
        s += f"""v_add_u32 v8, {2*i}, v6
        v_and_b32 v8, 15, v8
        v_lshl_add_u32 v{120+i}, v8, 4, v7
        """
    s += f"""s_lshr_b32 s92, s{sIDX}, 4
    s_lshl_b32 s92, s92, 18
    s_and_b32 s93, s{sIDX}, 15
    s_lshl_b32 s93, s93, 8
    s_add_u32 s92, s92, s93
    v_lshlrev_b32 v4, 12, v4
    v_lshl_add_u32 v4, v5, 4, v4
    v_add_u32 v124, s92, v4
    s_mov_b32 s92, 0x05040100
    s_mov_b32 s93, 0x07060302"""
    return s


def p0_math():
    o = []
    for ch in range(8):
        d, hi = ch >> 1, ch & 1
        sel = "s93" if hi else "s92"
        t = PP
        for r in range(1, 7):
            o.append(f"v_perm_b32 v{t+r-1}, v{PK+4*(r-1)+d}, v{PK+4*r+d}, {sel}")
        c01, c23 = PC + 2 * ch, PC + 2 * ch + 1
        for s in range(4):
            o.append(f"v_dot2_f32_bf16 v{t+6+s}, v{t+(s+3)-1}, v{c01}, 0")
        for s in range(4):
            o.append(f"v_dot2_f32_bf16 v{t+6+s}, v{t+(s+1)-1}, v{c23}, v{t+6+s}")
        for s in range(4):
            if hi:
                o.append(f"v_and_b32 v{t+10+s}, 0xffff0000, v{PV+4*s+d}")
            else:
                o.append(f"v_lshlrev_b32 v{t+10+s}, 16, v{PV+4*s+d}")
        for s in range(2):
            o.append(f"v_pk_mul_f32 v[{t+10+2*s}:{t+11+2*s}], v[{t+10+2*s}:{t+11+2*s}], v[{t+6+2*s}:{t+7+2*s}]")
        q = PO + 2 * (ch & 1)
        o.append(f"v_cvt_pk_bf16_f32 v{q}, v{t+10}, v{t+11}")
        o.append(f"v_cvt_pk_bf16_f32 v{q+1}, v{t+12}, v{t+13}")
        o.append(f"ds_write_b64 v125, v[{q}:{q+1}] offset:{256*ch}")
    return o


P0R = 88


def p0_readback():
    return [f"ds_read_b128 v[{P0R+4*i}:{P0R+4*i+3}], v{120+i} offset:{4096*i}" for i in range(4)]


def p0_stores():
    o = []
    for i in range(4):
        o.append(f"s_mov_b32 s92, {KVT + 65536*i}\nbuffer_store_dwordx4 v[{P0R+4*i}:{P0R+4*i+3}], v124, {srd(WS_)}, s92 offen sc1 ;@nc")
    return "\n".join(o)


GX, GG = 40, 80


def g_addr():
    A(f"""s_lshl_b32 s92, s{sIDX}, 5
    s_lshl_b32 s93, s{sW}, 3
    s_add_u32 s92, s92, s93
    v_lshrrev_b32 v4, 3, v{vLANE}
    v_add_u32 v122, s92, v4
    v_and_b32 v121, 7, v{vLANE}
    v_lshlrev_b32 v121, 4, v121
    s_movk_i32 s95, 1280
    v_mad_u32_u24 v120, v122, s95, v121""")


def g_loads():
    for i in range(10):
        A(f"buffer_load_dwordx4 v[{GX+4*i}:{GX+4*i+3}], v120, {srd(X_)}, 0 offen offset:{128*i}")
    for i in range(10):
        A(f"buffer_load_dwordx4 v[{GG+4*i}:{GG+4*i+3}], v121, {srd(GW_)}, 0 offen offset:{128*i}" + (" ;@p0" if i == 9 else ""))


def g_compute():
    for i in range(40):
        A(f"v_dot2_f32_bf16 v6, v{GX+i}, v{GG+i}, {'0' if i == 0 else 'v6'}")
    A(f"""s_nop 2
    v_add_f32_dpp v7, v6, v6 quad_perm:[1,0,3,2] row_mask:0xf bank_mask:0xf
    s_nop 1
    v_add_f32_dpp v6, v7, v7 quad_perm:[2,3,0,1] row_mask:0xf bank_mask:0xf
    s_nop 1
    v_add_f32_dpp v7, v6, v6 row_half_mirror row_mask:0xf bank_mask:0xf
    v_mul_f32 v7, 0xbfb8aa3b, v7
    v_exp_f32 v7, v7
    s_nop 0
    v_add_f32 v7, 1.0, v7
    v_rcp_f32 v7, v7
    v_lshrrev_b32 v8, 3, v122
    v_lshlrev_b32 v8, 7, v8
    v_and_b32 v122, 7, v122
    v_lshl_add_u32 v122, v122, 2, v8
    v_add_u32 v122, {GWS}, v122
    s_cmp_lt_u32 s{sIDX}, 64
    s_cselect_b32 s92, 0, {OOB}
    s_mov_b32 exec_lo, 0x01010101
    s_mov_b32 exec_hi, 0x01010101
    buffer_store_dword v7, v122, {srd(WS_)}, s92 offen sc1
    s_mov_b64 exec, -1""")


def w2_img(light, k):
    if light:
        i = k % 4
        reg = [2 * L_SLOT, 0][i >> 1]
    else:
        i = k % 6
        reg = [H_SLOT, 2 * H_SLOT, 0][i >> 1]
    base = reg + (i & 1) * 4224
    big = 2 * (L_SLOT if light else H_SLOT)
    if reg == big:
        return base, vW2R2, base - big
    return base, vW2R, base


def w2_D(light, k):
    base, _, _ = w2_img(light, k)
    o = [] if k == 13 else [f"s_add_u32 s{sTMP}, s{sW2O}, {k*32*1280}"]
    ring = 4 if light else 6
    if k >= ring:
        o.append(f"@lg w2r_{k-ring}")
    so = f"s{sW2L}" if k == 13 else f"s{sTMP}"
    for i in range(4):
        o.append(f"s_add_u32 m0, s{sRBASE}, {base + i*1056 - i*1280}" if base + i*1056 - i*1280 >= 0 else
                 f"s_sub_u32 m0, s{sRBASE}, {-(base + i*1056 - i*1280)}")
        o.append(f"buffer_load_dwordx4 v{vW2D}, {srd(W2_)}, {so} offen offset:{i*1280} lds" + (f" ;@w2_{k}" if i == 3 else ""))
    return o


def w2_R(light, k):
    _, reg, imm = w2_img(light, k)
    o = []
    for dt in range(4):
        for sec in range(2):
            r = 16 * k + 4 * dt + 2 * sec
            o.append(f"ds_read_b64_tr_b16 a[{r}:{r+1}], v{reg} offset:{imm + sec*256 + dt*32}")
    o[-1] += f" ;@w2r_{k}"
    return [f"@vm w2_{k}"] + o


UL, HD, HP, HT, HZ = 88, 224, 240, 104, 248
vHE, vHO = 9, 13


def cv_hdma(phi):
    lo = 32 if phi == 0 else 48
    o = [f"s_add_u32 m0, s{sHBASE}, {HE + (phi >> 1)*CS + lo}\ns_add_u32 s{sTMP}, s{sCHO}, {lo - 32 - 2*phi}"]
    for i in range(4):
        o.append(f"buffer_load_dwordx4 v{vLIN}, {srd(SK_)}, s{sTMP} offen offset:{1024*i} lds" + (" ;@hd" if i == 3 else ""))
    return o


def cv_dload():
    return f"s_lshr_b32 s{sTMP}, s{sCHO}, 11\nbuffer_load_ushort v{vD}, v{vZERO}, {srd(SD_)}, s{sTMP} offen"


def cv_hread(i):
    return [f"ds_read_b128 v[{HD+4*i}:{HD+4*i+3}], v{vHE} offset:{32+1024*i}",
            f"ds_read_b64 v[{HP+2*i}:{HP+2*i+1}], v{vHE} offset:{24+1024*i} ;@hr{i}"]


def cv_hcopy(i):
    d, pp, p, t = HD + 4 * i, HP + 2 * i, HP + 2 * i + 1, HT + 12 * (i & 1)
    off = 32 + 1024 * i
    o = [f"@lg hr{i}",
         f"v_alignbit_b32 v{t}, v{d}, v{p}, 16",
         f"v_alignbit_b32 v{t+1}, v{d+1}, v{d}, 16",
         f"v_alignbit_b32 v{t+2}, v{d+2}, v{d+1}, 16",
         f"v_alignbit_b32 v{t+3}, v{d+3}, v{d+2}, 16",
         f"ds_write_b128 v{vHO}, v[{t}:{t+3}] offset:{off}",
         f"v_alignbit_b32 v{t+8}, v{p}, v{pp}, 16",
         f"v_mov_b32 v{t+9}, v{t}",
         f"v_mov_b32 v{t+10}, v{t+1}",
         f"v_mov_b32 v{t+11}, v{t+2}",
         f"ds_write_b128 v{vHO}, v[{t+8}:{t+11}] offset:{CS+off}"]
    return o


def cv_uloads():
    o = []
    for i in range(4):
        o.append(f"buffer_load_dwordx4 v[{UL+4*i}:{UL+4*i+3}], v{vLIN}, {srd(WS_)}, s{sCHO} offen offset:{1024*i} sc1 ;@u{i}")
    return o


def cv_zero_h():
    Z = HZ
    return L(f"""s_add_u32 s92, s{sHBASE}, {HE}
    v_add_u32 v{vHE}, s92, v{vLIN}
    v_subrev_u32 v{vHO}, {HE - HO}, v{vHE}
    v_mov_b32 v{Z}, 0
    v_mov_b32 v{Z+1}, 0
    v_mov_b32 v{Z+2}, 0
    v_mov_b32 v{Z+3}, 0""") + [f"""s_mov_b64 exec, 3
    ds_write_b128 v{vHE}, v[{Z}:{Z+3}]
    ds_write_b128 v{vHE}, v[{Z}:{Z+3}] offset:{CS}
    s_mov_b64 exec, -1""", f"""s_mov_b64 exec, 3
    ds_write_b128 v{vHO}, v[{Z}:{Z+3}]
    ds_write_b128 v{vHO}, v[{Z}:{Z+3}] offset:{CS}
    s_mov_b64 exec, -1"""]


def cv_head2():
    Z = HZ
    return L(f"""v_mov_b32 v{Z+4}, 0
    v_mov_b32 v{Z+5}, v{HD}
    v_mov_b32 v{Z+6}, v{HD+1}
    v_mov_b32 v{Z+7}, v{HD+2}
    v_lshlrev_b32 v{vD}, 16, v{vD}""") + [f"""s_mov_b64 exec, 1
    ds_write_b128 v{vHE}, v[{Z+4}:{Z+7}] offset:{CS+32}
    s_mov_b32 exec_lo, -1
    ds_write_b128 v{vUL}, v[{Z}:{Z+3}]
    s_mov_b64 exec, -1"""]


def cv_uwrites():
    return [f"@vm u{i}\nds_write_b128 v{vUL}, v[{UL+4*i}:{UL+4*i+3}] offset:{512+1024*i}" for i in range(4)]


def cv_reads(b):
    F = CV_F + 64 * (b & 1)
    r = []
    for a in range(8):
        r.append(f"ds_read_b64_tr_b16 v[{F+4*a}:{F+4*a+1}], v{vCA} offset:{512*a+8+64*b}")
        r.append(f"ds_read_b64_tr_b16 v[{F+4*a+2}:{F+4*a+3}], v{vCA} offset:{512*a+64*b}")
        r.append(f"ds_read_b128 v[{F+32+4*a}:{F+32+4*a+3}], v{vCB} offset:{512*a+448-64*b}")
    r[-1] += " ;@cvr"
    return r


def cv_mfmas(b):
    F = CV_F + 64 * (b & 1)
    out = []
    for a in range(8):
        for d in range(8 - a):
            c = CV_ACC + 4 * (a + d)
            src = "0" if (b == 0 and a == 0) else f"v[{c}:{c+3}]"
            out.append(f"v_mfma_f32_16x16x32_bf16 v[{c}:{c+3}], v[{F+4*a}:{F+4*a+3}], v[{F+32+4*d}:{F+32+4*d+3}], {src}")
    return out


def cv_epilogue(extra, fill):
    E = CV_F + 64
    for cg in range(8):
        A(f"ds_read_b64 v[{E+2*cg}:{E+2*cg+1}], v{vCU} offset:{512*cg} ;@kv{cg}")
    m = []
    for cg in range(8):
        c = CV_ACC + 4 * cg
        t = E + 16 + 4 * (cg & 1)
        m += L(f"""@lg kv{cg}
        v_lshlrev_b32 v{t}, 16, v{E+2*cg}
        v_and_b32 v{t+1}, 0xffff0000, v{E+2*cg}
        v_lshlrev_b32 v{t+2}, 16, v{E+2*cg+1}
        v_and_b32 v{t+3}, 0xffff0000, v{E+2*cg+1}
        v_fmac_f32 v{c}, v{t}, v{vD}
        v_fmac_f32 v{c+1}, v{t+1}, v{vD}
        v_fmac_f32 v{c+2}, v{t+2}, v{vD}
        v_fmac_f32 v{c+3}, v{t+3}, v{vD}
        v_cvt_pk_bf16_f32 v{c}, v{c}, v{c+1}
        v_cvt_pk_bf16_f32 v{c+1}, v{c+2}, v{c+3}
        ds_write_b64 v{vCU}, v[{c}:{c+1}] offset:{512*cg}""")
    A(spread(m, fill))
    R = E + 32
    for i in range(4):
        A(f"ds_read_b128 v[{R+4*i}:{R+4*i+3}], v{vUL} offset:{512+1024*i} ;@yr{i}")
    A(extra)
    A(f"s_add_u32 s92, s{sCHO}, {Y2T}")
    for i in range(4):
        A(f"""@lg yr{i}
        buffer_store_dwordx4 v[{R+4*i}:{R+4*i+3}], v{vLIN}, {srd(WS_)}, s92 offen offset:{1024*i} sc1""")
    A(LG0)


def g2_init():
    o = [f"""s_cmp_ge_u32 s{sU2}, s{sNT2}
    s_cselect_b32 s92, s{sNT2}, 0
    s_sub_u32 s{sTAU}, s{sU2}, s92""" + (f"\ns_mov_b32 s{sTAU}, 0" if "rot2" not in OPT else ""),
         f"""s_mov_b32 s{sPT}, s{sTAU}
    s_mov_b32 s{sLT}, 0
    s_mov_b32 s{sTI}, 0""",
         f"""s_mov_b32 s{sYOK}, 0
    s_mov_b32 s{sQ1}, {32*1280}
    s_mov_b32 s{sQ2}, {64*1280}"""]
    o += f"""v_lshrrev_b32 v4, 3, v0
    v_and_b32 v5, 7, v0
    s_lshl_b32 s92, s{sT0}, 4
    v_add_u32 v6, s92, v4
    v_lshrrev_b32 v7, 3, v6
    v_lshlrev_b32 v7, 7, v7
    v_and_b32 v8, 7, v6
    v_lshl_add_u32 v7, v8, 2, v7
    v_add_u32 v18, {GWS}, v7
    s_movk_i32 s92, 1280
    v_lshlrev_b32 v8, 4, v5
    v_mad_u32_u24 v6, v6, s92, v8
    s_lshl_b32 s92, s{sU2}, 7
    v_add_u32 v17, s92, v6
    v_mul_u32_u24 v19, {PSTR}, v4
    v_lshl_add_u32 v19, v5, 5, v19
    v_lshrrev_b32 v6, 1, v5
    v_mul_u32_u24 v6, {WAREA}, v6
    v_lshl_add_u32 v6, v4, 5, v6
    v_and_b32 v8, 1, v5
    v_lshl_add_u32 v21, v8, 4, v6
    v_add_u32 v20, {2*WAREA}, v19""".split("\n")
    return o


def g2_q_loads():
    so = ["0", f"s{sQ1}", f"s{sQ2}"]
    return [f"buffer_load_dwordx4 v[{FQ+4*p}:{FQ+4*p+3}], v17, {srd(X_)}, {so[p]} offen" for p in range(3)]


def g2_yaddr():
    o = [f"s_add_u32 s94, s{sWA}, {YST}", f"s_lshl_b32 s95, s{sNT2}, 5", f"v_mov_b32 v12, {OOB}"]
    for i in range(3):
        o += f"""v_add_u32 v4, {64*i}, v{vLANE}
        v_mul_u32_u24 v5, 171, v4
        v_lshrrev_b32 v5, 11, v5
        v_mul_u32_u24 v6, 12, v5
        v_sub_u32 v6, v4, v6
        v_lshlrev_b32 v6, 4, v6
        v_lshl_add_u32 v7, v5, 12, v6
        v_cmp_gt_u32 vcc, s95, v6
        v_mul_u32_u24 v5, 208, v5
        v_add3_u32 v{13+i}, v5, v6, s94
        v_cndmask_b32 v{FA+i}, v12, v7, vcc""".split("\n")
    o += f"""v_lshrrev_b32 v4, 2, v{vLANE}
    v_mul_u32_u24 v4, 208, v4
    v_and_b32 v5, 3, v{vLANE}
    v_lshl_add_u32 v4, v5, 3, v4
    v_add_u32 v22, s94, v4
    v_and_b32 v5, 15, v{vLANE}
    v_lshlrev_b32 v5, 5, v5
    v_lshrrev_b32 v6, 4, v{vLANE}
    v_lshl_add_u32 v5, v6, 3, v5
    s_add_u32 s94, s{sWA}, {YP}
    v_add_u32 v{FA+3}, s94, v5""".split("\n")
    return [x.strip() for x in o]


def g2_yloads():
    o = [f"buffer_load_dwordx4 v[{FYL+4*i}:{FYL+4*i+3}], v{FA+i}, {srd(WS_)}, s{sYOFF} offen sc1" for i in range(3)]
    o += [f"buffer_load_dword v{FG+p}, v18, {srd(WS_)}, {f's{sG2}' if p == 2 else '0'} offen offset:{512*p} sc1" for p in range(3)]
    return "\n".join(o)


def g2_hoff():
    return [
        f"s_add_u32 s92, s{sT0}, s{sTAU}\ns_mul_i32 s92, s92, 54",
        f"s_add_u32 s92, s92, s{sKS0}\ns_lshl_b32 s92, s92, 10",
        f"s_add_u32 s92, s92, {HWS}\ns_cmp_ge_u32 s{sLT}, s{sNT2}\ns_cselect_b32 s{sHB}, {OOB}, s92",
        f"s_add_u32 s{sHB+1}, s{sHB}, 4096\ns_add_u32 s{sHB+2}, s{sHB}, 8192",
        f"s_add_u32 s{sHB+3}, s{sHB}, 12288\ns_cmp_ge_u32 s{sW}, 2\ns_cselect_b32 s{sHL}, {OOB}, s{sHB+3}",
        f"s_add_u32 s{sLT}, s{sLT}, 1\ns_add_u32 s{sTAU}, s{sTAU}, 1",
        f"s_cmp_eq_u32 s{sTAU}, s{sNT2}\ns_cselect_b32 s{sTAU}, 0, s{sTAU}",
    ]


HMOD = "" if "x_hplain" in OPT else (" sc0 sc1" if "x_hsc01" in OPT else (" nt" if "x_hnt" in OPT else " sc1"))


def g2_hload(st, k):
    r = G2_H[st] + 4 * k
    so = f"s{sHL}" if k == 13 else f"s{sHB + (k >> 2)}"
    return f"buffer_load_dwordx4 v[{r}:{r+3}], v{vLIN}, {srd(WS_)}, {so} offen offset:{(k & 3)*1024}{HMOD}"


def g2_first_loads(st):
    return g2_hoff() + [g2_hload(st, k) for k in range(14)]


def g2_pwrite(st):
    out = [f"s_mul_i32 s93, s{sPT}, {16*PSTR}\nv_add_u32 v{vPW}, s93, v{vPW0}",
           f"s_add_u32 s{sPT}, s{sPT}, 1\ns_cmp_eq_u32 s{sPT}, s{sNT2}\ns_cselect_b32 s{sPT}, 0, s{sPT}"]
    for dt in range(4):
        a = G2_ACC + 16 * st + 4 * dt
        out.append(f"ds_write_b128 v{vPW}, v[{a}:{a+3}] offset:{64*dt}")
    return out


def gemm2():
    top, done1, fin = label("Lg2"), label("Lg2e"), label("Lg2f")

    def tile(st, first=False):
        if "itg2" in OPT:
            if first:
                A("s_mov_b32 s97, 0")
            A("s_memrealtime s[100:101]\ns_memtime s[98:99]\ns_waitcnt lgkmcnt(0)\ns_mov_b32 m0, s97\ns_nop 0\n"
              "v_writelane_b32 v8, s100, m0\nv_writelane_b32 v9, s98, m0\ns_add_u32 s97, s97, 1")
        hoff = g2_hoff()
        fill = {0: hoff[:3], 1: hoff[3:6], 2: hoff[6:]}
        if first:
            ya = g2_yaddr()
            for k in range(2, 14):
                fill.setdefault(k, [])
                fill[k] += ["\n".join(ya[:2]), "\n".join(ya[2:4])] if ya else []
                ya = ya[4:]
            assert not ya
        else:
            pw = g2_pwrite(1 - st)
            fill[2] += pw[:2]
            for i in range(4):
                fill[4 + 2 * i] = [pw[2 + i]]
            l1, l2, l3 = label("Ly"), label("Ly"), label("Ly")
            fill[3] = [f"s_cmp_lt_u32 s{sLT}, {optv('ystart', 5)}\ns_cselect_b32 s93, 2, s{sYOK}",
                       f"s_cmp_lg_u32 s93, 2\ns_cbranch_scc1 {l1}\n{l2}:"]
            ool.append(f"""{l1}:
            s_cmp_eq_u32 s{sYOK}, 0
            s_cbranch_scc1 {l3}
            s_waitcnt vmcnt(14)
            v_cmp_ne_u64 vcc, s[{sN}:{sN+1}], v[{vPD}:{vPD+1}]
            s_nop 3
            s_cmp_eq_u64 vcc, 0
            s_cbranch_scc0 {l3}
            s_mov_b32 s{sYOK}, 2
            {g2_yloads()}
            s_branch {l2}
            {l3}:
            s_mov_b32 s{sYOK}, 1
            buffer_load_dwordx2 v[{vPD}:{vPD+1}], v{vFY}, {srd(WS_)}, 0 offen sc1
            s_branch {l2}""")
        for k in range(14):
            A("s_waitcnt vmcnt(27)")
            h = G2_H[st] + 4 * k
            f = list(fill.get(k, []))
            for dt in range(4):
                a = G2_ACC + 16 * st + 4 * dt
                c = "0" if k == 0 else f"v[{a}:{a+3}]"
                A(f"v_mfma_f32_16x16x32_bf16 v[{a}:{a+3}], a[{16*k+4*dt}:{16*k+4*dt+3}], v[{h}:{h+3}], {c}")
                if f and dt < 3:
                    A(f.pop(0))
            A(f)
            A(g2_hload(st, k))

    tile(0, first=True)
    A("s_waitcnt vmcnt(14)")
    A(signal(f"s{sFLY}"))
    A(g2_q_loads())
    A("s_barrier")
    A(f"{top}:")
    tile(1)
    A(f"""s_add_u32 s{sTI}, s{sTI}, 2
    s_cmp_eq_u32 s{sTI}, s{sNT2}
    s_cbranch_scc1 {done1}""")
    tile(0)
    A(f"""s_add_u32 s92, s{sTI}, 1
    s_cmp_lg_u32 s92, s{sNT2}
    s_cbranch_scc1 {top}
    s_nop 3""")
    A(g2_pwrite(0))
    A(f"""s_branch {fin}
    {done1}:
    s_nop 3""")
    A(g2_pwrite(1))
    A(f"{fin}:")
    stamp(6)
    if "itg2" in OPT:
        A(f"v_writelane_b32 v9, s{sYOK}, 7\nv_writelane_b32 v9, s47, 8")
        OPT.add("itst")
        itdump(8)
        OPT.remove("itst")


def final():
    ok = label("Lyk")
    A(f"""s_cmp_eq_u32 s{sYOK}, 2
    s_cbranch_scc1 {ok}""")
    A(poll_check(vFY, None))
    A(g2_yloads())
    A(f"{ok}:")
    A("s_waitcnt vmcnt(0)")
    for i in range(3):
        A(f"ds_write_b128 v{13+i}, v[{FYL+4*i}:{FYL+4*i+3}]")
    A(LG0)
    for t in range(6):
        A(f"ds_read_b64_tr_b16 v[{FYL+2*t}:{FYL+2*t+1}], v22 offset:{32*t}")
    for t in range(6):
        A(f"""s_waitcnt lgkmcnt(5)
        ds_write_b64 v{FA+3}, v[{FYL+2*t}:{FYL+2*t+1}] offset:{512*t}""")
    A("""s_waitcnt lgkmcnt(0)
    s_barrier""")
    last = label("Lfe")
    so = ["0", f"s{sQ1}", f"s{sQ2}"]

    def rd(p):
        R = 40 + 40 * p
        po = 32 * PSTR * p
        for w in range(4):
            va = 19 if w < 2 else 20
            for hh in range(2):
                A(f"ds_read_b128 v[{R+8*w+4*hh}:{R+8*w+4*hh+3}], v{va} offset:{po + (w & 1)*WAREA + 16*hh}")
        A(f"ds_read_b128 v[{R+32}:{R+35}], v21 offset:{YP + 1024*p}")

    rd(0)
    for p in range(3):
        R = 40 + 40 * p
        U = 200
        if p == 2:
            A(f"""s_cmp_lg_u32 s{sG2}, 0
            s_cbranch_scc1 {last}""")
        for e in range(4):
            A(f"v_lshlrev_b32 v{U+2*e}, 16, v{FQ+4*p+e}")
            A(f"v_and_b32 v{U+2*e+1}, 0xffff0000, v{FQ+4*p+e}")
        A(LG0)
        if p < 2:
            rd(p + 1)
        for e in range(4):
            A(f"v_pk_add_f32 v[{R+2*e}:{R+2*e+1}], v[{R+2*e}:{R+2*e+1}], v[{R+8+2*e}:{R+8+2*e+1}]")
        for e in range(4):
            A(f"v_pk_add_f32 v[{R+16+2*e}:{R+16+2*e+1}], v[{R+16+2*e}:{R+16+2*e+1}], v[{R+24+2*e}:{R+24+2*e+1}]")
        for e in range(4):
            A(f"v_lshlrev_b32 v{R+8+2*e}, 16, v{R+32+e}")
            A(f"v_and_b32 v{R+8+2*e+1}, 0xffff0000, v{R+32+e}")
        for e in range(4):
            A(f"v_pk_add_f32 v[{R+2*e}:{R+2*e+1}], v[{R+2*e}:{R+2*e+1}], v[{R+16+2*e}:{R+16+2*e+1}]")
        for e in range(4):
            A(f"v_pk_fma_f32 v[{U+2*e}:{U+2*e+1}], v[{U+2*e}:{U+2*e+1}], v[{R+8+2*e}:{R+8+2*e+1}], v[{R+2*e}:{R+2*e+1}] neg_lo:[0,0,1] neg_hi:[0,0,1]")
        for e in range(8):
            A(f"v_fmac_f32 v{R+e}, v{FG+p}, v{U+e}")
        for e in range(4):
            A(f"v_cvt_pk_bf16_f32 v{R+36+e}, v{R+2*e}, v{R+2*e+1}")
        A(f"buffer_store_dwordx4 v[{R+36}:{R+39}], v17, {srd(O_)}, {so[p]} offen")
    A(f"{last}:")


def nonce_load():
    A(f"buffer_load_dwordx2 v[{vNON}:{vNON+1}], v{vZERO}, {srd(DB_)}, 0 offen sc1")


prologue()
A(f"""s_cmp_lt_u32 s{sLIGHT}, 4
s_cbranch_scc0 Lheavy""")

NT = 3
p0_addr()
g1_addr_setup(NT)
A(g1_dma_begin(NT))
A(LG0)
stamp(0)
nonce_producer()
p0_loads()
A(flat(g1_dma_list(NT)))
A("@tag c0")
A(post_setup(True))
A(g1_read_setup(NT))
A(zero(G1_ACC, 32 * NT))
A(p0_pre())
stamp(11)
A("@vm p0")
A(spread(p0_math(), g1_dma_begin(NT) + flat(g1_dma_list(NT)) + g1_dma_begin(NT) + g1_parts(NT)[0]))
stamp(1)
g1_loop(NT)
hc = [cv_hcopy(i) for i in range(4)]
D_, R_ = (lambda k: w2_D(True, k)), (lambda k: w2_R(True, k))
h2, ul, uw, zh = cv_hdma(2), cv_uloads(), cv_uwrites(), cv_zero_h()
g1_body(NT, [[poll_check(vFK, "done")] + ul[:2] + zh[:8],
             cv_hread(0) + cv_hread(1) + ul[2:] + zh[8:],
             cv_hread(2) + cv_hread(3) + h2[:3] + hc[0][:6],
             h2[3:] + hc[0][6:] + hc[1][:6]], "@vm c9\n@lg g1r")
g1_body(NT, [D_(0) + hc[1][6:],
             D_(1) + hc[2][:6],
             hc[2][6:] + hc[3][:6],
             D_(2) + hc[3][6:] + cv_head2()], "@lg g1r", last=True)
stamp(2)
itdump()
A(EPI_CONST)
E_ = [D_(3), uw[:1], uw[1:2], uw[2:3] + R_(0), uw[3:] + R_(1), cv_reads(0)]
for t in range(6):
    if "tpe" in OPT:
        tp(t)
    A(spread(g1_epi_tile(t >> 1, t & 1, "hs"), E_[t]))
if "tpe" in OPT:
    tp(6)
stamp(8)
hchk = f"""@vm hp
v_cmp_ne_u64 vcc, s[{sN}:{sN+1}], v[{vPD}:{vPD+1}]
s_nop 3
s_cmp_eq_u64 vcc, 0
s_cselect_b32 s{sLT}, 0, 64"""
fl0, fl1 = g2_first_loads(0), g2_first_loads(1)
cvfill = {
    0: (D_(4) + D_(5), R_(2) + R_(3)[:5]),
    1: (D_(6) + g2_init(), R_(3)[5:] + ["@vm hs\ns_barrier\n" + wave0_signal(f"s{sFLH}")]),
    2: (D_(7), R_(4) + R_(5)[:5]),
    3: (D_(8), R_(5)[5:] + R_(6)),
    4: (D_(9) + D_(10), R_(7)),
    5: (D_(11), R_(8)),
    6: ([poll_issue(vFH, "hp")] + D_(12), R_(9) + R_(10)[:5]),
    7: (D_(13) + [hchk] + fl0[:7], zipf(R_(10)[5:] + R_(11) + R_(12), fl0[7:])),
}
for b in range(8):
    if "tpc" in OPT:
        tp(b)
    A("@lg cvr")
    other, late = cvfill[b]
    if b < 7:
        A(weave(cv_mfmas(b), zipf(cv_reads(b + 1), other) + late, 12))
    else:
        A(weave(cv_mfmas(b), other + late, 12))
stamp(9)
tpdump()
cv_epilogue(R_(13), fl1)
if "itg2" in OPT:
    A(f"s_mov_b32 s47, s{sLT}")
A(f"""s_cmp_lt_u32 s{sLT}, 64
s_cbranch_scc1 Lg2start
buffer_load_dwordx2 v[{vPD}:{vPD+1}], v{vFH}, {srd(WS_)}, 0 offen sc1
s_waitcnt vmcnt(0)""")
A(signal(f"s{sFLY}"))
A(poll_check(vFH, None))
A(f"""s_mov_b32 s{sTAU}, s{sPT}
s_mov_b32 s{sLT}, 0
s_branch Lg2loads""")

A("Lheavy:")
NT = 4
g1_addr_setup(NT)
A(g1_dma_begin(NT))
A(LG0)
stamp(0)
A(flat(g1_dma_list(NT)))
A("@tag c0")
if "x_c0" in OPT:
    stamp(13)
    A("@vm c0")
    stamp(14)
A(g1_read_setup(NT))
A(spread(zero(G1_ACC, 32 * NT), g1_dma_begin(NT) + flat(g1_dma_list(NT))))
A(post_setup(False))
A(g1_dma_begin(NT) + g1_parts(NT)[0])
nonce_load()
stamp(11)
stamp(1)
g1_loop(NT)
g1_body(NT, [w2_D(False, 0), w2_D(False, 1), [], w2_D(False, 2)], "@vm c9\n@lg g1r")
g1_body(NT, [w2_D(False, 3), w2_R(False, 0), w2_R(False, 1), w2_D(False, 4) + w2_D(False, 5) + w2_D(False, 6)], "@lg g1r", last=True)
stamp(2)
itdump()
A(EPI_CONST)
A(spread(g1_epi_tile(0, 0), w2_D(False, 7)))
for t in range(1, 8):
    A(g1_epi_tile(t >> 1, t & 1, "hs"))
stamp(12)
A(w2_R(False, 2) + w2_R(False, 3) + w2_D(False, 8) + w2_R(False, 4) + w2_D(False, 9) + w2_R(False, 5) + w2_D(False, 10))
A(w2_R(False, 6) + w2_D(False, 11) + w2_R(False, 7))
A(get_nonce())
A("@vm hs\ns_barrier")
A(wave0_signal(f"s{sFLH}"))
stamp(3)
A(w2_D(False, 12) + w2_D(False, 13))
g_addr()
g_loads()
A(g2_init())
for k in range(8, 14):
    A(w2_R(False, k))
A("@vm p0")
g_compute()
A(f"""s_cmp_ge_u32 s{sL}, 250
s_cbranch_scc1 Lend""")
stamp(4)
A(f"""s_cmp_lg_u32 s{sW}, 0
s_cbranch_scc1 Lhw""")
A(f"buffer_load_dwordx2 v[{vPD}:{vPD+1}], v{vFH}, {srd(WS_)}, 0 offen sc1")
A(poll_check(vFH, None))
A("""Lhw:
s_barrier
Lg2loads:""")
A(g2_first_loads(0) + g2_first_loads(1))
A(LG0)

A("Lg2start:")
stamp(5)
gemm2()
final()
stamp(7)
A("Lend:")
A("s_endpgm")
A(ool)

hdr = open(f"cdna_kernels/{NAME}.s.ref").read().split("\n")
head = [l for l in hdr if l.startswith(";") and "@launch" not in l]
text = "\n".join(head) + f"""
; @launch grid=(256,1,1) block=(256,1,1) lds=163840
.amdgcn_target "amdgcn-amd-amdhsa--gfx950"
.text
.globl {NAME}_kernel
.p2align 8
.type {NAME}_kernel,@function
{NAME}_kernel:
""" + "\n".join(lines) + f"""
.section .rodata,"a"
.p2align 6
.amdhsa_kernel {NAME}_kernel
  .amdhsa_next_free_vgpr 512
  .amdhsa_next_free_sgpr 102
  .amdhsa_accum_offset 256
  .amdhsa_group_segment_fixed_size 0
  .amdhsa_kernarg_size 112
  .amdhsa_user_sgpr_count 2
  .amdhsa_user_sgpr_kernarg_segment_ptr 1
  .amdhsa_system_sgpr_workgroup_id_x 1
.end_amdhsa_kernel
"""
open(OUT, "w").write(text)
print("wrote", OUT, len(lines), "lines")
```
